```python
import torch

def _softmax(x, axis=-1):
    return torch.softmax(x, dim=axis)
def _gelu(x):
    return torch.nn.functional.gelu(x, approximate="tanh")
def _silu(x):
    return torch.nn.functional.silu(x)
def _sigmoid(x):
    return torch.sigmoid(x)
def _layernorm(x, axis=-1, eps=1e-5):
    m = x.mean(dim=axis, keepdim=True)
    v = x.var(dim=axis, keepdim=True, unbiased=False)
    return (x - m) / torch.sqrt(v + eps)
def _scatter_add(tgt, idx, src, axis=0):
    return tgt.clone().index_add_(axis, idx, src)
def _segment_sum(src, seg, n):
    out = torch.zeros((n,) + src.shape[1:], dtype=src.dtype)
    return out.index_add_(0, seg, src)
def _pad(x, pw):
    flat = tuple(v for pair in reversed(pw) for v in pair)
    return torch.nn.functional.pad(x, flat)

kernel_name = 'standalone__gqa_block_cached__decode'

def setup_inputs():

    _w = (lambda a: (lambda t: t.to(torch.bfloat16) if t.is_floating_point() else t)(torch.as_tensor(a)))
    B, Sq, D = 2, 1, 576
    Hq, Hkv, Sk, Dh = 32, 16, 32768, 128
    assert Hq % Hkv == 0, (Hq, Hkv)
    return {
        "x": _w((lambda *s: torch.randn(*s, dtype=torch.bfloat16) * 0.8)(B, Sq, D)),
        "k_cache": _w((lambda *s: torch.randn(*s, dtype=torch.bfloat16) * 0.8)(B, Hkv, Sk, Dh)),
        "v_cache": _w((lambda *s: torch.randn(*s, dtype=torch.bfloat16) * 0.05)(B, Hkv, Sk, Dh)),
        "wq": _w((lambda *s: torch.randn(*s, dtype=torch.bfloat16) * 0.8)(D, Hq * Dh) * (D ** -0.5)),
        "wo": _w((lambda *s: torch.randn(*s, dtype=torch.bfloat16) * 0.05)(Hq * Dh, D) * ((Hq * Dh) ** -0.5)),
    }

def reference(x, k_cache, v_cache, wq, wo):
    B, Sq, D = x.shape
    Hq, Dh = 32, 128
    Hkv = k_cache.shape[1]
    rep = Hq // Hkv
    q = (lambda x, *d: x.permute(*d))((x @ wq).reshape(B, Sq, Hq, Dh), 0, 2, 1, 3)
    k = (lambda x, n, axis: torch.repeat_interleave(x, n, dim=axis))(k_cache, rep, axis=1)
    v = (lambda x, n, axis: torch.repeat_interleave(x, n, dim=axis))(v_cache, rep, axis=1)
    scores = torch.einsum("bhqd,bhkd->bhqk", q, k) * (Dh ** -0.5)
    p = _softmax(scores, axis=-1)
    o = torch.einsum("bhqk,bhkd->bhqd", p, v)
    return (lambda x, *d: x.permute(*d))(o, 0, 2, 1, 3).reshape(B, Sq, Hq * Dh) @ wo
```

```python
import sys, math
NAME='standalone__gqa_block_cached__decode_kernel'
CEXP = math.log2(math.e)/math.sqrt(128.0)
import struct
def f2u(f): return struct.unpack('<I',struct.pack('<f',f))[0]

class Asm:
    def __init__(s): s.o=[]
    def __call__(s,t): s.o.append('  '+t)
    def label(s,l): s.o.append(l+':')
    def raw(s,t): s.o.append(t)
    def text(s): return '\n'.join(s.o)+'\n'

def kd(A,name,nv,ns=96):
    A.raw('.section .rodata,"a"'); A.raw('.p2align 6'); A.raw(f'.amdhsa_kernel {name}')
    A.raw(f'  .amdhsa_next_free_vgpr {nv}'); A.raw(f'  .amdhsa_next_free_sgpr {ns}')
    A.raw(f'  .amdhsa_accum_offset {min(256,(nv+3)//4*4)}')
    A.raw('  .amdhsa_group_segment_fixed_size 0'); A.raw('  .amdhsa_kernarg_size 64')
    A.raw('  .amdhsa_user_sgpr_count 2'); A.raw('  .amdhsa_user_sgpr_kernarg_segment_ptr 1')
    A.raw('  .amdhsa_system_sgpr_workgroup_id_x 1'); A.raw('.end_amdhsa_kernel')

def head(A,name):
    A.raw('.text'); A.raw(f'.globl {name}'); A.raw('.p2align 8'); A.raw(f'.type {name},@function'); A.label(name)

def selectors(A, vJ, vSel, t0, t1, t2, t3):
    A(f'v_and_b32 v{t0}, 1, v{vJ}')
    A(f'v_bfe_u32 v{t1}, v{vJ}, 1, 2')
    A(f'v_cmp_eq_u32 vcc, 1, v{t0}')
    A(f'v_mov_b32 v{t2}, 0x0c0c0100')
    A(f'v_mov_b32 v{t3}, 0x01000c0c')
    A(f'v_cndmask_b32 v{t2}, v{t2}, v{t3}, vcc')
    A(f'v_mov_b32 v{t0}, 0x0c0c0302')
    A(f'v_mov_b32 v{t3}, 0x03020c0c')
    A(f'v_cndmask_b32 v{t3}, v{t0}, v{t3}, vcc')
    A(f'v_mov_b32 v{t0}, 0x0c0c0c0c')
    for w in range(4):
        A(f'v_cmp_eq_u32 vcc, {w}, v{t1}')
        A('s_nop 1')
        A(f'v_cndmask_b32 v{vSel+2*w}, v{t0}, v{t2}, vcc')
        A(f'v_cndmask_b32 v{vSel+2*w+1}, v{t0}, v{t3}, vcc')

def gen(W=8, NB=2, mapping=0, ldflag=' nt', wflag=''):
    A=Asm()
    A.raw(f'; @launch kernel=main_kernel grid=(256,1,1) block=({W*64},1,1) lds={W*1024+1024}')
    A.raw(f'; @launch kernel=comb_kernel grid=(256,1,1) block=(256,1,1) lds=8192')
    A.raw(f'; @launch kernel=fin_kernel grid=(5,1,1) block=(256,1,1) lds=0')
    A.raw('.amdgcn_target "amdgcn-amd-amdhsa--gfx950"')
    head(A,'main_kernel')
    NR = (72+W-1)//W
    ntiles = 4096//32//W
    vLane,vG,vJ,vKoff,vVoff,vW0,vW1,vX,vXb = 1,2,3,4,5,6,7,8,9
    vM,vMc,vL,vT0,vT1,vT2,vT3 = 10,11,12,13,14,15,16
    vSel=18
    vAcc=28
    vB=32
    vQa=40
    vBuf=48
    vQ=vBuf+NB*64
    vS=vQ+16
    vPk=vS+8
    nv_main = vPk+4
    vWq = vBuf+64
    nv = max(nv_main, vWq+NR*16)
    assert nv<=256
    def KB(b): return vBuf+b*64
    def VB(b): return vBuf+b*64+32
    A('s_cmp_ge_u32 s2, 256'); A('s_cbranch_scc1 L_main_end')
    A('s_load_dwordx16 s[4:19], s[0:1], 0')
    A(f'v_and_b32 v{vLane}, 63, v0')
    A(f'v_lshrrev_b32 v{vT0}, 6, v0')
    A(f'v_lshrrev_b32 v{vG}, 4, v{vLane}')
    A(f'v_readfirstlane_b32 s40, v{vT0}')
    A(f'v_and_b32 v{vJ}, 15, v{vLane}')
    if mapping==0:
        A('s_lshr_b32 s41, s2, 3'); A('s_and_b32 s42, s2, 7')
    else:
        A('s_and_b32 s41, s2, 31'); A('s_lshr_b32 s42, s2, 5')
    A(f'v_and_b32 v{vT0}, 3, v{vJ}')
    A(f'v_lshlrev_b32 v{vT0}, 2, v{vT0}')
    A(f'v_lshrrev_b32 v{vT1}, 2, v{vJ}')
    A(f'v_add_u32 v{vT0}, v{vT0}, v{vT1}')
    A(f'v_lshlrev_b32 v{vT0}, 8, v{vT0}')
    A(f'v_lshl_add_u32 v{vKoff}, v{vG}, 4, v{vT0}')
    A(f'v_lshlrev_b32 v{vVoff}, 4, v{vLane}')
    A(f'v_lshlrev_b32 v{vT0}, 14, v{vG}')
    A(f'v_lshl_add_u32 v{vW0}, v{vJ}, 4, v{vT0}')
    A(f'v_add_u32 v{vW1}, 0x2000, v{vW0}')
    A(f'v_mul_u32_u24 v{vT0}, {16*W}, v{vJ}')
    A(f'v_lshl_add_u32 v{vT0}, v{vG}, 2, v{vT0}')
    A('s_lshl_b32 s47, s40, 4')
    A(f'v_add_u32 v{vT0}, s47, v{vT0}')
    A('s_lshl_b32 s43, s42, 20')
    A('s_add_u32 s22, s43, 0x100000')
    A('s_mov_b32 s26, s22')
    A('s_lshl_b32 s47, s40, 13')
    A('s_add_u32 s43, s43, s47')
    A('s_mov_b32 s48, s43')
    A('s_lshl_b32 s50, s41, 23'); A('s_lshr_b32 s51, s41, 9')
    A('s_mov_b32 s23, 0x20000'); A('s_mov_b32 s27, 0x20000'); A('s_mov_b32 s31, 0x20000'); A('s_mov_b32 s35, 0x20000'); A('s_mov_b32 s39, 0x20000')
    A('s_and_b32 s52, s41, 15')
    A('s_lshr_b32 s53, s41, 4')
    A('s_waitcnt lgkmcnt(0)')
    A('s_add_u32 s20, s6, s50'); A('s_addc_u32 s21, s7, s51')
    A('s_add_u32 s24, s8, s50'); A('s_addc_u32 s25, s9, s51')
    step = 8192*W
    def loadK(b):
        A('s_add_u32 s44, s43, 0x1000')
        for t in range(2):
            for s in range(4):
                r=KB(b)+(t*4+s)*4
                A(f'buffer_load_dwordx4 v[{r}:{r+3}], v{vKoff}, s[20:23], s{43+t} offen offset:{s*64}{ldflag}')
        A(f's_add_u32 s43, s43, {step}')
    def loadV(b):
        A('s_add_u32 s49, s48, 0x1000')
        for t in range(2):
            for s in range(4):
                r=VB(b)+(t*4+s)*4
                A(f'buffer_load_dwordx4 v[{r}:{r+3}], v{vVoff}, s[24:27], s{48+t} offen offset:{s*1024}{ldflag}')
        A(f's_add_u32 s48, s48, {step}')
    loadK(0); loadV(0)
    A('s_mul_i32 s47, s53, 1152')
    A('s_add_u32 s32, s4, s47'); A('s_addc_u32 s33, s5, 0'); A('s_mov_b32 s34, 1152')
    A('s_lshl_b32 s47, s52, 9')
    A('s_add_u32 s28, s10, s47'); A('s_addc_u32 s29, s11, 0'); A(f's_sub_u32 s30, {576*8192}, s47')
    A(f'buffer_load_dword v{vX}, v{vT0}, s[32:35], 0 offen')
    A('s_lshl_b32 s54, s40, 16')
    for n in range(NR):
        for pi in range(2):
            for h in range(2):
                r=vWq+(n*4+pi*2+h)*4
                A(f'buffer_load_dwordx4 v[{r}:{r+3}], v{vW0+pi}, s[28:31], s54 offen offset:{h*256}{wflag}')
        if n<NR-1: A(f's_add_u32 s54, s54, {W*65536}')
    selectors(A,vJ,vSel,vT0,vT1,vT2,vT3)
    A(f'v_mov_b32 v{vM}, 0xff7fffff'); A(f'v_mov_b32 v{vMc}, 0xff7fffff'); A(f'v_mov_b32 v{vL}, 0')
    for i in range(4): A(f'v_mov_b32 v{vAcc+i}, 0')
    A(f's_mov_b32 s46, 0x{f2u(CEXP):08x}')
    for n in range(NR):
        A(f's_waitcnt vmcnt({(NR-1-n)*4})')
        A(f'v_mov_b32_dpp v{vXb}, v{vX} row_newbcast:{n} row_mask:0xf bank_mask:0xf')
        for pi in range(2):
            for w in range(4):
                A(f'v_perm_b32 v{vB+pi*4+w}, v{vXb}, v{vXb}, v{vSel+2*w+pi}')
        A('s_nop 1')
        for pi in range(2):
            for h in range(2):
                r=vWq+(n*4+pi*2+h)*4
                c = '0' if (n==0 and pi==0) else f'v[{vQa+4*h}:{vQa+4*h+3}]'
                A(f'v_mfma_f32_16x16x32_bf16 v[{vQa+4*h}:{vQa+4*h+3}], v[{r}:{r+3}], v[{vB+pi*4}:{vB+pi*4+3}], {c}')
    for b in range(1,NB):
        loadK(b); loadV(b)
    A('s_mov_b32 s56, 0xff00ff00'); A('s_mov_b32 s57, 0xff00ff00')
    A('s_nop 7')
    for i in range(4): A(f'v_cndmask_b32 v{vS+i}, v{vQa+i}, v{vQa+4+i}, s[56:57]')
    A('s_lshl_b32 s47, s40, 10')
    A(f'v_add_u32 v{vT0}, s47, v{vVoff}')
    A(f'ds_write_b128 v{vT0}, v[{vS}:{vS+3}]')
    A('s_waitcnt lgkmcnt(0)'); A('s_barrier')
    QAREA=W*1024
    A('s_cmp_ge_u32 s40, 4'); A('s_cbranch_scc1 L_q_skip')
    A(f'v_lshlrev_b32 v{vT0}, 2, v0')
    for w in range(W):
        A(f'ds_read_b32 v{vQ+w}, v{vT0} offset:{w*1024}')
    A(f'v_bfe_u32 v{vT1}, v0, 5, 1'); A(f'v_lshlrev_b32 v{vT1}, 8, v{vT1}')
    A(f'v_lshrrev_b32 v{vT2}, 6, v0'); A(f'v_lshl_add_u32 v{vT1}, v{vT2}, 6, v{vT1}')
    A(f'v_and_b32 v{vT2}, 3, v0'); A(f'v_lshl_add_u32 v{vT1}, v{vT2}, 4, v{vT1}')
    A(f'v_bfe_u32 v{vT2}, v0, 2, 3'); A(f'v_lshl_add_u32 v{vT1}, v{vT2}, 1, v{vT1}')
    A('s_waitcnt lgkmcnt(0)')
    for w in range(1,W): A(f'v_add_f32 v{vQ}, v{vQ}, v{vQ+w}')
    A(f'v_cvt_pk_bf16_f32 v{vQ}, v{vQ}, v{vQ}')
    A(f'ds_write_b16 v{vT1}, v{vQ} offset:{QAREA}')
    A('s_waitcnt lgkmcnt(0)')
    A.label('L_q_skip')
    A('s_barrier')
    A(f'v_lshrrev_b32 v{vT0}, 3, v{vJ}'); A(f'v_lshlrev_b32 v{vT0}, 8, v{vT0}')
    A(f'v_lshl_add_u32 v{vT0}, v{vG}, 4, v{vT0}')
    for s in range(4): A(f'ds_read_b128 v[{vQ+4*s}:{vQ+4*s+3}], v{vT0} offset:{QAREA+64*s}')
    A('s_waitcnt lgkmcnt(0)')
    assert ntiles%NB==0
    A(f's_mov_b32 s45, {ntiles//NB}')
    VC = 8*(2*NB-1)
    A.label('L_loop')
    for b in range(NB):
        A(f's_waitcnt vmcnt({VC})')
        for s in range(4):
            for t in range(2):
                r=KB(b)+(t*4+s)*4
                c='0' if s==0 else f'v[{vS+4*t}:{vS+4*t+3}]'
                A(f'v_mfma_f32_16x16x32_bf16 v[{vS+4*t}:{vS+4*t+3}], v[{r}:{r+3}], v[{vQ+4*s}:{vQ+4*s+3}], {c}')
        loadK(b)
        A(f'v_max3_f32 v{vT0}, v{vS}, v{vS+1}, v{vS+2}')
        A(f'v_max3_f32 v{vT1}, v{vS+3}, v{vS+4}, v{vS+5}')
        A(f'v_max3_f32 v{vT0}, v{vT0}, v{vS+6}, v{vS+7}')
        A(f'v_max_f32 v{vT0}, v{vT0}, v{vT1}')
        A(f'v_cmp_gt_f32 vcc, v{vT0}, v{vM}')
        A(f's_cbranch_vccz L_fast{b}')
        A(f'v_mov_b32 v{vT1}, v{vT0}')
        A('s_nop 1')
        A(f'v_permlane32_swap_b32 v{vT0}, v{vT1}')
        A(f'v_max_f32 v{vT0}, v{vT0}, v{vT1}')
        A(f'v_mov_b32 v{vT1}, v{vT0}')
        A('s_nop 1')
        A(f'v_permlane16_swap_b32 v{vT0}, v{vT1}')
        A(f'v_max3_f32 v{vM}, v{vT0}, v{vT1}, v{vM}')
        A(f'v_mul_f32 v{vT0}, s46, v{vM}')
        A(f'v_sub_f32 v{vT1}, v{vMc}, v{vT0}')
        A(f'v_mov_b32 v{vMc}, v{vT0}')
        A(f'v_exp_f32 v{vT1}, v{vT1}')
        A('s_nop 0')
        A(f'v_mul_f32 v{vL}, v{vL}, v{vT1}')
        for i in range(4): A(f'v_mul_f32 v{vAcc+i}, v{vAcc+i}, v{vT1}')
        A.label(f'L_fast{b}')
        for i in range(8): A(f'v_fma_f32 v{vS+i}, v{vS+i}, s46, -v{vMc}')
        for i in range(8): A(f'v_exp_f32 v{vS+i}, v{vS+i}')
        A('s_nop 0')
        for i in range(4): A(f'v_cvt_pk_bf16_f32 v{vPk+i}, v{vS+2*i}, v{vS+2*i+1}')
        A(f'v_add_f32 v{vT0}, v{vS}, v{vS+1}'); A(f'v_add_f32 v{vT1}, v{vS+2}, v{vS+3}')
        A(f'v_add_f32 v{vT2}, v{vS+4}, v{vS+5}'); A(f'v_add_f32 v{vT3}, v{vS+6}, v{vS+7}')
        A(f'v_add_f32 v{vT0}, v{vT0}, v{vT1}'); A(f'v_add_f32 v{vT2}, v{vT2}, v{vT3}')
        A(f'v_add_f32 v{vL}, v{vL}, v{vT0}'); A(f'v_add_f32 v{vL}, v{vL}, v{vT2}')
        def perms(i):
            for w in range(4):
                A(f'v_perm_b32 v{vB+(i%2)*4+w}, v{vPk+i//2}, v{vPk+i//2}, v{vSel+2*w+(i%2)}')
        perms(0); perms(1)
        A(f's_waitcnt vmcnt({VC})')
        for i in range(8):
            r=VB(b)+i*4
            A(f'v_mfma_f32_16x16x32_bf16 v[{vAcc}:{vAcc+3}], v[{r}:{r+3}], v[{vB+(i%2)*4}:{vB+(i%2)*4+3}], v[{vAcc}:{vAcc+3}]')
            if i+2<8: perms(i+2)
            elif i==6: A('s_nop 1')
        loadV(b)
    A('s_sub_u32 s45, s45, 1'); A('s_cmp_lg_u32 s45, 0'); A('s_cbranch_scc1 L_loop')
    A(f'v_mov_b32 v{vT1}, v{vL}'); A('s_nop 1')
    A(f'v_permlane32_swap_b32 v{vL}, v{vT1}'); A(f'v_add_f32 v{vL}, v{vL}, v{vT1}')
    A(f'v_mov_b32 v{vT1}, v{vL}'); A('s_nop 1')
    A(f'v_permlane16_swap_b32 v{vL}, v{vT1}'); A(f'v_add_f32 v{vL}, v{vL}, v{vT1}')
    A('s_waitcnt vmcnt(0)')
    A('s_barrier')
    A('s_lshl_b32 s47, s40, 10')
    A(f'v_add_u32 v{vT0}, s47, v{vVoff}')
    A(f'ds_write_b128 v{vT0}, v[{vAcc}:{vAcc+3}]')
    A(f'v_lshrrev_b32 v{vT0}, 3, v{vJ}'); A(f'v_lshlrev_b32 v{vT0}, 3, v{vT0}')
    A('s_lshl_b32 s47, s40, 4'); A(f'v_add_u32 v{vT0}, s47, v{vT0}')
    A(f'v_mov_b32 v{vMc+1}, v{vL}')
    A('s_mov_b64 s[58:59], exec'); A('s_mov_b64 exec, 0x101')
    A(f'v_mov_b32 v{vT2}, v{vMc}'); A(f'v_mov_b32 v{vT3}, v{vL}')
    A(f'ds_write_b32 v{vT0}, v{vT2} offset:{QAREA}')
    A(f'ds_write_b32 v{vT0}, v{vT3} offset:{QAREA+4}')
    A('s_mov_b64 exec, s[58:59]')
    A('s_waitcnt lgkmcnt(0)'); A('s_barrier')
    A('s_cmp_ge_u32 s40, 4'); A('s_cbranch_scc1 L_main_end')
    A(f'v_lshlrev_b32 v{vT0}, 2, v0')
    vO=vBuf; vML=vBuf+32
    for w in range(W): A(f'ds_read_b32 v{vO+w}, v{vT0} offset:{w*1024}')
    A(f'v_bfe_u32 v{vT1}, v0, 5, 1'); A(f'v_lshlrev_b32 v{vT1}, 3, v{vT1}')
    for w in range(W): A(f'ds_read_b64 v[{vML+2*w}:{vML+2*w+1}], v{vT1} offset:{QAREA+w*16}')
    A('s_waitcnt lgkmcnt(0)')
    A(f'v_mov_b32 v{vM}, v{vML}')
    for w in range(1,W): A(f'v_max_f32 v{vM}, v{vM}, v{vML+2*w}')
    for w in range(W): A(f'v_sub_f32 v{vML+2*w}, v{vML+2*w}, v{vM}')
    for w in range(W): A(f'v_exp_f32 v{vML+2*w}, v{vML+2*w}')
    A('s_nop 0')
    A(f'v_mul_f32 v{vT2}, v{vO}, v{vML}'); A(f'v_mul_f32 v{vT3}, v{vML+1}, v{vML}')
    for w in range(1,W):
        A(f'v_fma_f32 v{vT2}, v{vO+w}, v{vML+2*w}, v{vT2}'); A(f'v_fma_f32 v{vT3}, v{vML+2*w+1}, v{vML+2*w}, v{vT3}')
    A('s_mov_b32 s36, s18'); A('s_mov_b32 s37, s19'); A('s_mov_b32 s38, 0x100000')
    A('s_lshl_b32 s47, s41, 3'); A('s_add_u32 s47, s47, s42')
    A('s_lshl_b32 s54, s47, 10')
    A(f'buffer_store_dword v{vT2}, v{vT0}, s[36:39], s54 offen')
    A('s_lshl_b32 s54, s47, 4'); A('s_add_u32 s54, s54, 0x40000')
    A(f'v_mov_b32 v{vT2}, v{vM}')
    A('s_cmp_lg_u32 s40, 0'); A('s_cbranch_scc1 L_main_end')
    A('s_mov_b32 exec_lo, 1'); A('s_mov_b32 exec_hi, 1')
    A(f'v_mov_b32 v{vS}, v{vM}'); A(f'v_mov_b32 v{vS+1}, v{vT3}')
    A(f'buffer_store_dwordx2 v[{vS}:{vS+1}], v{vT1}, s[36:39], s54 offen')
    A.label('L_main_end')
    A('s_endpgm')

    head(A,'comb_kernel')
    A('s_cmp_ge_u32 s2, 256'); A('s_cbranch_scc1 L_comb_end')
    A('s_load_dwordx16 s[4:19], s[0:1], 0')
    A(f'v_and_b32 v{vLane}, 63, v0'); A(f'v_lshrrev_b32 v{vT0}, 6, v0'); A(f'v_lshrrev_b32 v{vG}, 4, v{vLane}')
    A(f'v_readfirstlane_b32 s40, v{vT0}'); A(f'v_and_b32 v{vJ}, 15, v{vLane}')
    A('s_lshr_b32 s41, s2, 3'); A('s_and_b32 s42, s2, 7'); A('s_and_b32 s52, s41, 15')
    A('s_mov_b32 s39, 0x20000'); A('s_mov_b32 s31, 0x20000')
    A('s_waitcnt lgkmcnt(0)')
    A('s_mov_b32 s36, s18'); A('s_mov_b32 s37, s19'); A('s_mov_b32 s38, 0x100000')
    A(f'v_lshlrev_b32 v{vT0}, 2, v0')
    A('s_lshl_b32 s54, s41, 13')
    vO=32; vML=48; vWo=64
    for s in range(8):
        if s==4: A('s_add_u32 s54, s54, 0x1000')
        A(f'buffer_load_dword v{vO+s}, v{vT0}, s[36:39], s54 offen offset:{(s%4)*1024}')
    A(f'v_bfe_u32 v{vT1}, v0, 5, 1'); A(f'v_lshlrev_b32 v{vT1}, 3, v{vT1}')
    A('s_lshl_b32 s54, s41, 7'); A('s_add_u32 s54, s54, 0x40000')
    for s in range(8): A(f'buffer_load_dwordx2 v[{vML+2*s}:{vML+2*s+1}], v{vT1}, s[36:39], s54 offen offset:{s*16}')
    A('s_mul_i32 s47, s52, 294912'); A('s_mul_i32 s55, s42, 144'); A('s_add_u32 s47, s47, s55')
    A('s_add_u32 s28, s12, s47'); A('s_addc_u32 s29, s13, 0'); A(f's_sub_u32 s30, {4096*1152}, s47')
    A(f'v_min_u32 v{vT2}, 8, v{vJ}'); A(f'v_lshlrev_b32 v{vT2}, 4, v{vT2}')
    A(f'v_mul_u32_u24 v{vT3}, 2304, v{vG}'); A(f'v_add_u32 v{vW0}, v{vT2}, v{vT3}')
    A('s_mul_i32 s54, s40, 9216')
    for n in range(8):
        for pi in range(2):
            r=vWo+(n*2+pi)*4
            A(f'buffer_load_dwordx4 v[{r}:{r+3}], v{vW0}, s[28:31], s54 offen offset:{pi*1152}')
        if n<7: A(f's_add_u32 s54, s54, {4*9216}')
    selectors(A,vJ,vSel,26,27,vT2,vT3)
    A('s_waitcnt vmcnt(16)')
    A(f'v_mov_b32 v{vM}, v{vML}')
    for w in range(1,8): A(f'v_max_f32 v{vM}, v{vM}, v{vML+2*w}')
    for w in range(8): A(f'v_sub_f32 v{vML+2*w}, v{vML+2*w}, v{vM}')
    for w in range(8): A(f'v_exp_f32 v{vML+2*w}, v{vML+2*w}')
    A('s_nop 0')
    A(f'v_mul_f32 v{vT2}, v{vO}, v{vML}'); A(f'v_mul_f32 v{vT3}, v{vML+1}, v{vML}')
    for w in range(1,8):
        A(f'v_fma_f32 v{vT2}, v{vO+w}, v{vML+2*w}, v{vT2}'); A(f'v_fma_f32 v{vT3}, v{vML+2*w+1}, v{vML+2*w}, v{vT3}')
    A(f'v_rcp_f32 v{vT3}, v{vT3}'); A('s_nop 0')
    A(f'v_mul_f32 v{vT2}, v{vT2}, v{vT3}')
    A(f'v_cvt_pk_bf16_f32 v{vT2}, v{vT2}, v{vT2}')
    A(f'v_bfe_u32 v{vT1}, v0, 5, 1'); A(f'v_lshlrev_b32 v{vT1}, 8, v{vT1}')
    A(f'v_lshrrev_b32 v{vT3}, 6, v0'); A(f'v_lshl_add_u32 v{vT1}, v{vT3}, 6, v{vT1}')
    A(f'v_and_b32 v{vT3}, 3, v0'); A(f'v_lshl_add_u32 v{vT1}, v{vT3}, 4, v{vT1}')
    A(f'v_bfe_u32 v{vT3}, v0, 2, 3'); A(f'v_lshl_add_u32 v{vT1}, v{vT3}, 1, v{vT1}')
    A(f'ds_write_b16 v{vT1}, v{vT2} offset:4096')
    A('s_waitcnt lgkmcnt(0)'); A('s_barrier')
    A(f'v_and_b32 v{vT0}, 7, v{vJ}')
    A(f'v_lshlrev_b32 v{vT0}, 6, v{vT0}'); A(f'v_lshl_add_u32 v{vT0}, v{vG}, 2, v{vT0}')
    A('s_lshl_b32 s47, s40, 4'); A(f'v_add_u32 v{vT0}, s47, v{vT0}')
    A(f'ds_read_b32 v{vX}, v{vT0} offset:4096')
    A('s_waitcnt lgkmcnt(0) vmcnt(0)')
    vB2=136
    for n in range(8):
        A(f'v_mov_b32_dpp v{vXb}, v{vX} row_newbcast:{n} row_mask:0xf bank_mask:0xf')
        for pi in range(2):
            for w in range(4):
                A(f'v_perm_b32 v{vB2+pi*4+w}, v{vXb}, v{vXb}, v{vSel+2*w+pi}')
        A('s_nop 1')
        for pi in range(2):
            r=vWo+(n*2+pi)*4
            c='0' if (n==0 and pi==0) else f'v[{vAcc}:{vAcc+3}]'
            A(f'v_mfma_f32_16x16x32_bf16 v[{vAcc}:{vAcc+3}], v[{r}:{r+3}], v[{vB2+pi*4}:{vB2+pi*4+3}], {c}')
    A('s_nop 7'); A('s_nop 1')
    A(f'v_lshlrev_b32 v{vT0}, 4, v0')
    A(f'ds_write_b128 v{vT0}, v[{vAcc}:{vAcc+3}]')
    A('s_waitcnt lgkmcnt(0)'); A('s_barrier')
    A('s_cmp_ge_u32 s40, 2'); A('s_cbranch_scc1 L_comb_end')
    A(f'v_lshrrev_b32 v{vT0}, 5, v0'); A(f'v_lshlrev_b32 v{vT0}, 8, v{vT0}')
    A(f'v_and_b32 v{vT1}, 7, v0'); A(f'v_lshl_add_u32 v{vT0}, v{vT1}, 4, v{vT0}')
    A(f'v_bfe_u32 v{vT1}, v0, 3, 2'); A(f'v_lshl_add_u32 v{vT0}, v{vT1}, 2, v{vT0}')
    for w in range(4): A(f'ds_read_b32 v{vO+w}, v{vT0} offset:{w*1024}')
    A('s_waitcnt lgkmcnt(0)')
    A(f'v_add_f32 v{vO}, v{vO}, v{vO+1}'); A(f'v_add_f32 v{vO+2}, v{vO+2}, v{vO+3}'); A(f'v_add_f32 v{vO}, v{vO}, v{vO+2}')
    A('s_mul_i32 s54, s41, 2304'); A('s_mul_i32 s55, s42, 288'); A('s_add_u32 s54, s54, s55'); A('s_add_u32 s54, s54, 0x80000')
    A(f'v_lshlrev_b32 v{vT0}, 2, v0')
    A('v_cmp_gt_u32 vcc, 72, v0'); A('s_and_saveexec_b64 s[58:59], vcc')
    A(f'buffer_store_dword v{vO}, v{vT0}, s[36:39], s54 offen')
    A.label('L_comb_end')
    A('s_endpgm')

    head(A,'fin_kernel')
    A('s_cmp_ge_u32 s2, 5'); A('s_cbranch_scc1 L_fin_end')
    A('s_load_dwordx16 s[4:19], s[0:1], 0')
    A('s_lshl_b32 s3, s2, 8'); A('v_add_u32 v1, s3, v0')
    A('v_cmp_le_u32 vcc, 576, v1'); A('s_nop 1')
    A('v_cndmask_b32 v2, 0, 1, vcc')
    A('v_mul_u32_u24 v3, 576, v2'); A('v_sub_u32 v3, v1, v3')
    A(f'v_mul_u32_u24 v4, {16*2304}, v2'); A('v_lshl_add_u32 v4, v3, 2, v4')
    A('s_waitcnt lgkmcnt(0)')
    A('s_mov_b32 s36, s18'); A('s_mov_b32 s37, s19'); A('s_mov_b32 s38, 0x100000'); A('s_mov_b32 s39, 0x20000')
    A('s_mov_b32 s54, 0x80000')
    for h in range(16):
        A(f'buffer_load_dword v{8+h}, v4, s[36:39], s54 offen')
        A('s_add_u32 s54, s54, 2304')
    A('s_mov_b32 s32, s14'); A('s_mov_b32 s33, s15'); A('s_mov_b32 s34, 2304'); A('s_mov_b32 s35, 0x20000')
    A('s_waitcnt vmcnt(0)')
    for h in range(1,16): A(f'v_add_f32 v8, v8, v{8+h}')
    A('v_cvt_pk_bf16_f32 v8, v8, v8')
    A('v_lshlrev_b32 v5, 1, v1')
    A('buffer_store_short v8, v5, s[32:35], 0 offen')
    A.label('L_fin_end')
    A('s_endpgm')
    kd(A,'main_kernel',nv); kd(A,'comb_kernel',144); kd(A,'fin_kernel',32)
    return A.text()

if __name__=='__main__':
    import subprocess
    open('k1.s','w').write(gen())
    print(subprocess.run(['python','build.py','k1.s'],capture_output=True,text=True))
```

```python
import sys, math
NAME='standalone__gqa_block_cached__decode_kernel'
CEXP = math.log2(math.e)/math.sqrt(128.0)
import struct
def f2u(f): return struct.unpack('<I',struct.pack('<f',f))[0]

class Asm:
    def __init__(s): s.o=[]
    def __call__(s,t): s.o.append('  '+t)
    def label(s,l): s.o.append(l+':')
    def raw(s,t): s.o.append(t)
    def text(s): return '\n'.join(s.o)+'\n'

def kd(A,name,nv,ns=96):
    A.raw('.section .rodata,"a"'); A.raw('.p2align 6'); A.raw(f'.amdhsa_kernel {name}')
    A.raw(f'  .amdhsa_next_free_vgpr {nv}'); A.raw(f'  .amdhsa_next_free_sgpr {ns}')
    A.raw(f'  .amdhsa_accum_offset {min(256,(nv+3)//4*4)}')
    A.raw('  .amdhsa_group_segment_fixed_size 0'); A.raw('  .amdhsa_kernarg_size 64')
    A.raw('  .amdhsa_user_sgpr_count 2'); A.raw('  .amdhsa_user_sgpr_kernarg_segment_ptr 1')
    A.raw('  .amdhsa_system_sgpr_workgroup_id_x 1'); A.raw('.end_amdhsa_kernel')

def head(A,name):
    A.raw('.text'); A.raw(f'.globl {name}'); A.raw('.p2align 8'); A.raw(f'.type {name},@function'); A.label(name)

def selectors(A, vJ, vSel, t0, t1, t2, t3):
    A(f'v_and_b32 v{t0}, 1, v{vJ}')
    A(f'v_bfe_u32 v{t1}, v{vJ}, 1, 2')
    A(f'v_cmp_eq_u32 vcc, 1, v{t0}')
    A(f'v_mov_b32 v{t2}, 0x0c0c0100')
    A(f'v_mov_b32 v{t3}, 0x01000c0c')
    A(f'v_cndmask_b32 v{t2}, v{t2}, v{t3}, vcc')
    A(f'v_mov_b32 v{t0}, 0x0c0c0302')
    A(f'v_mov_b32 v{t3}, 0x03020c0c')
    A(f'v_cndmask_b32 v{t3}, v{t0}, v{t3}, vcc')
    A(f'v_mov_b32 v{t0}, 0x0c0c0c0c')
    for w in range(4):
        A(f'v_cmp_eq_u32 vcc, {w}, v{t1}')
        A('s_nop 1')
        A(f'v_cndmask_b32 v{vSel+2*w}, v{t0}, v{t2}, vcc')
        A(f'v_cndmask_b32 v{vSel+2*w+1}, v{t0}, v{t3}, vcc')

def gen(W=8, NB=2, mapping=0, ldflag=' nt', wflag='', vflag=None, stamp=False):
    if vflag is None: vflag=ldflag
    A=Asm()
    A.raw(f'; @launch kernel=main_kernel grid=(256,1,1) block=({W*64},1,1) lds={W*1024+1024}')
    A.raw(f'; @launch kernel=comb_kernel grid=(256,1,1) block=(256,1,1) lds=8192')
    A.raw(f'; @launch kernel=fin_kernel grid=(5,1,1) block=(256,1,1) lds=0')
    A.raw('.amdgcn_target "amdgcn-amd-amdhsa--gfx950"')
    head(A,'main_kernel')
    NR = (72+W-1)//W
    ntiles = 4096//32//W
    vLane,vG,vJ,vKoff,vVoff,vW0,vW1,vX,vXb = 1,2,3,4,5,6,7,8,9
    vM,vMc,vL,vT0,vT1,vT2,vT3 = 10,11,12,13,14,15,16
    vSel=18
    vAcc=28
    vB=32
    vQa=40
    vBuf=48
    vQ=vBuf+NB*64
    vS=vQ+16
    vPk=vS+8
    nv_main = vPk+4
    vWq = vBuf+64
    nv = max(nv_main, vWq+NR*16)
    assert nv<=256
    def KB(b): return vBuf+b*64
    def VB(b): return vBuf+b*64+32
    A('s_cmp_ge_u32 s2, 256'); A('s_cbranch_scc1 L_main_end')
    if stamp: A('s_memrealtime s[60:61]')
    A('s_load_dwordx16 s[4:19], s[0:1], 0')
    A(f'v_and_b32 v{vLane}, 63, v0')
    A(f'v_lshrrev_b32 v{vT0}, 6, v0')
    A(f'v_lshrrev_b32 v{vG}, 4, v{vLane}')
    A(f'v_readfirstlane_b32 s40, v{vT0}')
    A(f'v_and_b32 v{vJ}, 15, v{vLane}')
    if mapping==0:
        A('s_lshr_b32 s41, s2, 3'); A('s_and_b32 s42, s2, 7')
    else:
        A('s_and_b32 s41, s2, 31'); A('s_lshr_b32 s42, s2, 5')
    A(f'v_and_b32 v{vT0}, 3, v{vJ}')
    A(f'v_lshlrev_b32 v{vT0}, 2, v{vT0}')
    A(f'v_lshrrev_b32 v{vT1}, 2, v{vJ}')
    A(f'v_add_u32 v{vT0}, v{vT0}, v{vT1}')
    A(f'v_lshlrev_b32 v{vT0}, 8, v{vT0}')
    A(f'v_lshl_add_u32 v{vKoff}, v{vG}, 4, v{vT0}')
    A(f'v_lshlrev_b32 v{vVoff}, 4, v{vLane}')
    A(f'v_lshlrev_b32 v{vT0}, 14, v{vG}')
    A(f'v_lshl_add_u32 v{vW0}, v{vJ}, 4, v{vT0}')
    A(f'v_add_u32 v{vW1}, 0x2000, v{vW0}')
    A(f'v_mul_u32_u24 v{vT0}, {16*W}, v{vJ}')
    A(f'v_lshl_add_u32 v{vT0}, v{vG}, 2, v{vT0}')
    A('s_lshl_b32 s47, s40, 4')
    A(f'v_add_u32 v{vT0}, s47, v{vT0}')
    A('s_lshl_b32 s43, s42, 20')
    A('s_add_u32 s22, s43, 0x100000')
    A('s_mov_b32 s26, s22')
    A('s_lshl_b32 s47, s40, 13')
    A('s_add_u32 s43, s43, s47')
    A('s_mov_b32 s48, s43')
    A('s_lshl_b32 s50, s41, 23'); A('s_lshr_b32 s51, s41, 9')
    A('s_mov_b32 s23, 0x20000'); A('s_mov_b32 s27, 0x20000'); A('s_mov_b32 s31, 0x20000'); A('s_mov_b32 s35, 0x20000'); A('s_mov_b32 s39, 0x20000')
    A('s_and_b32 s52, s41, 15')
    A('s_lshr_b32 s53, s41, 4')
    A('s_waitcnt lgkmcnt(0)')
    A('s_add_u32 s20, s6, s50'); A('s_addc_u32 s21, s7, s51')
    A('s_add_u32 s24, s8, s50'); A('s_addc_u32 s25, s9, s51')
    step = 8192*W
    def loadK(b):
        A('s_add_u32 s44, s43, 0x1000')
        for t in range(2):
            for s in range(4):
                r=KB(b)+(t*4+s)*4
                A(f'buffer_load_dwordx4 v[{r}:{r+3}], v{vKoff}, s[20:23], s{43+t} offen offset:{s*64}{ldflag}')
        A(f's_add_u32 s43, s43, {step}')
    def loadV(b):
        A('s_add_u32 s49, s48, 0x1000')
        for t in range(2):
            for s in range(4):
                r=VB(b)+(t*4+s)*4
                A(f'buffer_load_dwordx4 v[{r}:{r+3}], v{vVoff}, s[24:27], s{48+t} offen offset:{s*1024}{vflag}')
        A(f's_add_u32 s48, s48, {step}')
    loadK(0); loadV(0)
    A('s_mul_i32 s47, s53, 1152')
    A('s_add_u32 s32, s4, s47'); A('s_addc_u32 s33, s5, 0'); A('s_mov_b32 s34, 1152')
    A('s_lshl_b32 s47, s52, 9')
    A('s_add_u32 s28, s10, s47'); A('s_addc_u32 s29, s11, 0'); A(f's_sub_u32 s30, {576*8192}, s47')
    A(f'buffer_load_dword v{vX}, v{vT0}, s[32:35], 0 offen')
    A('s_lshl_b32 s54, s40, 16')
    for n in range(NR):
        for pi in range(2):
            for h in range(2):
                r=vWq+(n*4+pi*2+h)*4
                A(f'buffer_load_dwordx4 v[{r}:{r+3}], v{vW0+pi}, s[28:31], s54 offen offset:{h*256}{wflag}')
        if n<NR-1: A(f's_add_u32 s54, s54, {W*65536}')
    selectors(A,vJ,vSel,vT0,vT1,vT2,vT3)
    A(f'v_mov_b32 v{vM}, 0xff7fffff'); A(f'v_mov_b32 v{vMc}, 0xff7fffff'); A(f'v_mov_b32 v{vL}, 0')
    for i in range(4): A(f'v_mov_b32 v{vAcc+i}, 0')
    A(f's_mov_b32 s46, 0x{f2u(CEXP):08x}')
    for n in range(NR):
        A(f's_waitcnt vmcnt({(NR-1-n)*4})')
        A(f'v_mov_b32_dpp v{vXb}, v{vX} row_newbcast:{n} row_mask:0xf bank_mask:0xf')
        for pi in range(2):
            for w in range(4):
                A(f'v_perm_b32 v{vB+pi*4+w}, v{vXb}, v{vXb}, v{vSel+2*w+pi}')
        A('s_nop 1')
        for pi in range(2):
            for h in range(2):
                r=vWq+(n*4+pi*2+h)*4
                c = '0' if (n==0 and pi==0) else f'v[{vQa+4*h}:{vQa+4*h+3}]'
                A(f'v_mfma_f32_16x16x32_bf16 v[{vQa+4*h}:{vQa+4*h+3}], v[{r}:{r+3}], v[{vB+pi*4}:{vB+pi*4+3}], {c}')
    if stamp:
        A('s_memrealtime s[70:71]'); A('s_waitcnt lgkmcnt(0)'); A('s_mov_b32 s69, s70')
    for b in range(1,NB):
        loadK(b); loadV(b)
    A('s_mov_b32 s56, 0xff00ff00'); A('s_mov_b32 s57, 0xff00ff00')
    A('s_nop 7')
    for i in range(4): A(f'v_cndmask_b32 v{vS+i}, v{vQa+i}, v{vQa+4+i}, s[56:57]')
    A('s_lshl_b32 s47, s40, 10')
    A(f'v_add_u32 v{vT0}, s47, v{vVoff}')
    A(f'ds_write_b128 v{vT0}, v[{vS}:{vS+3}]')
    A('s_waitcnt lgkmcnt(0)'); A('s_barrier')
    QAREA=W*1024
    A('s_cmp_ge_u32 s40, 4'); A('s_cbranch_scc1 L_q_skip')
    A(f'v_lshlrev_b32 v{vT0}, 2, v0')
    for w in range(W):
        A(f'ds_read_b32 v{vQ+w}, v{vT0} offset:{w*1024}')
    A(f'v_bfe_u32 v{vT1}, v0, 5, 1'); A(f'v_lshlrev_b32 v{vT1}, 8, v{vT1}')
    A(f'v_lshrrev_b32 v{vT2}, 6, v0'); A(f'v_lshl_add_u32 v{vT1}, v{vT2}, 6, v{vT1}')
    A(f'v_and_b32 v{vT2}, 3, v0'); A(f'v_lshl_add_u32 v{vT1}, v{vT2}, 4, v{vT1}')
    A(f'v_bfe_u32 v{vT2}, v0, 2, 3'); A(f'v_lshl_add_u32 v{vT1}, v{vT2}, 1, v{vT1}')
    A('s_waitcnt lgkmcnt(0)')
    for w in range(1,W): A(f'v_add_f32 v{vQ}, v{vQ}, v{vQ+w}')
    A(f'v_cvt_pk_bf16_f32 v{vQ}, v{vQ}, v{vQ}')
    A(f'ds_write_b16 v{vT1}, v{vQ} offset:{QAREA}')
    A('s_waitcnt lgkmcnt(0)')
    A.label('L_q_skip')
    A('s_barrier')
    A(f'v_lshrrev_b32 v{vT0}, 3, v{vJ}'); A(f'v_lshlrev_b32 v{vT0}, 8, v{vT0}')
    A(f'v_lshl_add_u32 v{vT0}, v{vG}, 4, v{vT0}')
    for s in range(4): A(f'ds_read_b128 v[{vQ+4*s}:{vQ+4*s+3}], v{vT0} offset:{QAREA+64*s}')
    A('s_waitcnt lgkmcnt(0)')
    assert ntiles%NB==0
    if stamp:
        A('s_memrealtime s[62:63]'); A('s_waitcnt lgkmcnt(0)')
    A(f's_mov_b32 s45, {ntiles//NB}')
    VC = 8*(2*NB-1)
    A.label('L_loop')
    for b in range(NB):
        A(f's_waitcnt vmcnt({VC})')
        for s in range(4):
            for t in range(2):
                r=KB(b)+(t*4+s)*4
                c='0' if s==0 else f'v[{vS+4*t}:{vS+4*t+3}]'
                A(f'v_mfma_f32_16x16x32_bf16 v[{vS+4*t}:{vS+4*t+3}], v[{r}:{r+3}], v[{vQ+4*s}:{vQ+4*s+3}], {c}')
        loadK(b)
        A(f'v_max3_f32 v{vT0}, v{vS}, v{vS+1}, v{vS+2}')
        A(f'v_max3_f32 v{vT1}, v{vS+3}, v{vS+4}, v{vS+5}')
        A(f'v_max3_f32 v{vT0}, v{vT0}, v{vS+6}, v{vS+7}')
        A(f'v_max_f32 v{vT0}, v{vT0}, v{vT1}')
        A(f'v_cmp_gt_f32 vcc, v{vT0}, v{vM}')
        A(f's_cbranch_vccz L_fast{b}')
        A(f'v_mov_b32 v{vT1}, v{vT0}')
        A('s_nop 1')
        A(f'v_permlane32_swap_b32 v{vT0}, v{vT1}')
        A(f'v_max_f32 v{vT0}, v{vT0}, v{vT1}')
        A(f'v_mov_b32 v{vT1}, v{vT0}')
        A('s_nop 1')
        A(f'v_permlane16_swap_b32 v{vT0}, v{vT1}')
        A(f'v_max3_f32 v{vM}, v{vT0}, v{vT1}, v{vM}')
        A(f'v_mul_f32 v{vT0}, s46, v{vM}')
        A(f'v_sub_f32 v{vT1}, v{vMc}, v{vT0}')
        A(f'v_mov_b32 v{vMc}, v{vT0}')
        A(f'v_exp_f32 v{vT1}, v{vT1}')
        A('s_nop 0')
        A(f'v_mul_f32 v{vL}, v{vL}, v{vT1}')
        for i in range(4): A(f'v_mul_f32 v{vAcc+i}, v{vAcc+i}, v{vT1}')
        A.label(f'L_fast{b}')
        for i in range(8): A(f'v_fma_f32 v{vS+i}, v{vS+i}, s46, -v{vMc}')
        for i in range(8): A(f'v_exp_f32 v{vS+i}, v{vS+i}')
        A('s_nop 0')
        for i in range(4): A(f'v_cvt_pk_bf16_f32 v{vPk+i}, v{vS+2*i}, v{vS+2*i+1}')
        A(f'v_add_f32 v{vT0}, v{vS}, v{vS+1}'); A(f'v_add_f32 v{vT1}, v{vS+2}, v{vS+3}')
        A(f'v_add_f32 v{vT2}, v{vS+4}, v{vS+5}'); A(f'v_add_f32 v{vT3}, v{vS+6}, v{vS+7}')
        A(f'v_add_f32 v{vT0}, v{vT0}, v{vT1}'); A(f'v_add_f32 v{vT2}, v{vT2}, v{vT3}')
        A(f'v_add_f32 v{vL}, v{vL}, v{vT0}'); A(f'v_add_f32 v{vL}, v{vL}, v{vT2}')
        def perms(i):
            for w in range(4):
                A(f'v_perm_b32 v{vB+(i%2)*4+w}, v{vPk+i//2}, v{vPk+i//2}, v{vSel+2*w+(i%2)}')
        perms(0); perms(1)
        A(f's_waitcnt vmcnt({VC})')
        for i in range(8):
            r=VB(b)+i*4
            A(f'v_mfma_f32_16x16x32_bf16 v[{vAcc}:{vAcc+3}], v[{r}:{r+3}], v[{vB+(i%2)*4}:{vB+(i%2)*4+3}], v[{vAcc}:{vAcc+3}]')
            if i+2<8: perms(i+2)
            elif i==6: A('s_nop 1')
        loadV(b)
    A('s_sub_u32 s45, s45, 1'); A('s_cmp_lg_u32 s45, 0'); A('s_cbranch_scc1 L_loop')
    if stamp:
        A('s_memrealtime s[64:65]'); A('s_waitcnt lgkmcnt(0)')
    A(f'v_mov_b32 v{vT1}, v{vL}'); A('s_nop 1')
    A(f'v_permlane32_swap_b32 v{vL}, v{vT1}'); A(f'v_add_f32 v{vL}, v{vL}, v{vT1}')
    A(f'v_mov_b32 v{vT1}, v{vL}'); A('s_nop 1')
    A(f'v_permlane16_swap_b32 v{vL}, v{vT1}'); A(f'v_add_f32 v{vL}, v{vL}, v{vT1}')
    A('s_waitcnt vmcnt(0)')
    A('s_barrier')
    A('s_lshl_b32 s47, s40, 10')
    A(f'v_add_u32 v{vT0}, s47, v{vVoff}')
    A(f'ds_write_b128 v{vT0}, v[{vAcc}:{vAcc+3}]')
    A(f'v_lshrrev_b32 v{vT0}, 3, v{vJ}'); A(f'v_lshlrev_b32 v{vT0}, 3, v{vT0}')
    A('s_lshl_b32 s47, s40, 4'); A(f'v_add_u32 v{vT0}, s47, v{vT0}')
    A(f'v_mov_b32 v{vMc+1}, v{vL}')
    A('s_mov_b64 s[58:59], exec'); A('s_mov_b64 exec, 0x101')
    A(f'v_mov_b32 v{vT2}, v{vMc}'); A(f'v_mov_b32 v{vT3}, v{vL}')
    A(f'ds_write_b32 v{vT0}, v{vT2} offset:{QAREA}')
    A(f'ds_write_b32 v{vT0}, v{vT3} offset:{QAREA+4}')
    A('s_mov_b64 exec, s[58:59]')
    A('s_waitcnt lgkmcnt(0)'); A('s_barrier')
    A('s_cmp_ge_u32 s40, 4'); A('s_cbranch_scc1 L_main_end')
    A(f'v_lshlrev_b32 v{vT0}, 2, v0')
    vO=vBuf; vML=vBuf+32
    for w in range(W): A(f'ds_read_b32 v{vO+w}, v{vT0} offset:{w*1024}')
    A(f'v_bfe_u32 v{vT1}, v0, 5, 1'); A(f'v_lshlrev_b32 v{vT1}, 3, v{vT1}')
    for w in range(W): A(f'ds_read_b64 v[{vML+2*w}:{vML+2*w+1}], v{vT1} offset:{QAREA+w*16}')
    A('s_waitcnt lgkmcnt(0)')
    A(f'v_mov_b32 v{vM}, v{vML}')
    for w in range(1,W): A(f'v_max_f32 v{vM}, v{vM}, v{vML+2*w}')
    for w in range(W): A(f'v_sub_f32 v{vML+2*w}, v{vML+2*w}, v{vM}')
    for w in range(W): A(f'v_exp_f32 v{vML+2*w}, v{vML+2*w}')
    A('s_nop 0')
    A(f'v_mul_f32 v{vT2}, v{vO}, v{vML}'); A(f'v_mul_f32 v{vT3}, v{vML+1}, v{vML}')
    for w in range(1,W):
        A(f'v_fma_f32 v{vT2}, v{vO+w}, v{vML+2*w}, v{vT2}'); A(f'v_fma_f32 v{vT3}, v{vML+2*w+1}, v{vML+2*w}, v{vT3}')
    A('s_mov_b32 s36, s18'); A('s_mov_b32 s37, s19'); A('s_mov_b32 s38, 0x100000')
    A('s_lshl_b32 s47, s41, 3'); A('s_add_u32 s47, s47, s42')
    A('s_lshl_b32 s54, s47, 10')
    A(f'buffer_store_dword v{vT2}, v{vT0}, s[36:39], s54 offen')
    A('s_lshl_b32 s54, s47, 4'); A('s_add_u32 s54, s54, 0x40000')
    A(f'v_mov_b32 v{vT2}, v{vM}')
    A('s_cmp_lg_u32 s40, 0'); A('s_cbranch_scc1 L_main_end')
    A('s_mov_b32 exec_lo, 1'); A('s_mov_b32 exec_hi, 1')
    A(f'v_mov_b32 v{vS}, v{vM}'); A(f'v_mov_b32 v{vS+1}, v{vT3}')
    A(f'buffer_store_dwordx2 v[{vS}:{vS+1}], v{vT1}, s[36:39], s54 offen')
    if stamp:
        A('s_waitcnt vmcnt(0)')
        A('s_memrealtime s[66:67]'); A('s_getreg_b32 s68, hwreg(HW_REG_XCC_ID)'); A('s_waitcnt lgkmcnt(0)')
        A('s_mov_b64 exec, 1')
        A(f'v_mov_b32 v{vS}, s60'); A(f'v_mov_b32 v{vS+1}, s62'); A(f'v_mov_b32 v{vS+2}, s64'); A(f'v_mov_b32 v{vS+3}, s66')
        A(f'v_mov_b32 v{vS+4}, s68'); A(f'v_mov_b32 v{vS+5}, s69'); A(f'v_mov_b32 v{vS+6}, s70'); A(f'v_mov_b32 v{vS+7}, s71')
        A('s_lshl_b32 s54, s2, 5'); A('s_add_u32 s54, s54, 0xc0000')
        A(f'v_mov_b32 v{vT1}, 0')
        A(f'buffer_store_dwordx4 v[{vS}:{vS+3}], v{vT1}, s[36:39], s54 offen')
        A(f'buffer_store_dwordx4 v[{vS+4}:{vS+7}], v{vT1}, s[36:39], s54 offen offset:16')
    A.label('L_main_end')
    A('s_endpgm')

    head(A,'comb_kernel')
    A('s_cmp_ge_u32 s2, 256'); A('s_cbranch_scc1 L_comb_end')
    A('s_load_dwordx16 s[4:19], s[0:1], 0')
    A(f'v_and_b32 v{vLane}, 63, v0'); A(f'v_lshrrev_b32 v{vT0}, 6, v0'); A(f'v_lshrrev_b32 v{vG}, 4, v{vLane}')
    A(f'v_readfirstlane_b32 s40, v{vT0}'); A(f'v_and_b32 v{vJ}, 15, v{vLane}')
    A('s_lshr_b32 s41, s2, 3'); A('s_and_b32 s42, s2, 7'); A('s_and_b32 s52, s41, 15')
    A('s_mov_b32 s39, 0x20000'); A('s_mov_b32 s31, 0x20000')
    A('s_waitcnt lgkmcnt(0)')
    A('s_mov_b32 s36, s18'); A('s_mov_b32 s37, s19'); A('s_mov_b32 s38, 0x100000')
    A(f'v_lshlrev_b32 v{vT0}, 2, v0')
    A('s_lshl_b32 s54, s41, 13')
    vO=32; vML=48; vWo=64
    for s in range(8):
        if s==4: A('s_add_u32 s54, s54, 0x1000')
        A(f'buffer_load_dword v{vO+s}, v{vT0}, s[36:39], s54 offen offset:{(s%4)*1024}')
    A(f'v_bfe_u32 v{vT1}, v0, 5, 1'); A(f'v_lshlrev_b32 v{vT1}, 3, v{vT1}')
    A('s_lshl_b32 s54, s41, 7'); A('s_add_u32 s54, s54, 0x40000')
    for s in range(8): A(f'buffer_load_dwordx2 v[{vML+2*s}:{vML+2*s+1}], v{vT1}, s[36:39], s54 offen offset:{s*16}')
    A('s_mul_i32 s47, s52, 294912'); A('s_mul_i32 s55, s42, 144'); A('s_add_u32 s47, s47, s55')
    A('s_add_u32 s28, s12, s47'); A('s_addc_u32 s29, s13, 0'); A(f's_sub_u32 s30, {4096*1152}, s47')
    A(f'v_min_u32 v{vT2}, 8, v{vJ}'); A(f'v_lshlrev_b32 v{vT2}, 4, v{vT2}')
    A(f'v_mul_u32_u24 v{vT3}, 2304, v{vG}'); A(f'v_add_u32 v{vW0}, v{vT2}, v{vT3}')
    A('s_mul_i32 s54, s40, 9216')
    for n in range(8):
        for pi in range(2):
            r=vWo+(n*2+pi)*4
            A(f'buffer_load_dwordx4 v[{r}:{r+3}], v{vW0}, s[28:31], s54 offen offset:{pi*1152}')
        if n<7: A(f's_add_u32 s54, s54, {4*9216}')
    selectors(A,vJ,vSel,26,27,vT2,vT3)
    A('s_waitcnt vmcnt(16)')
    A(f'v_mov_b32 v{vM}, v{vML}')
    for w in range(1,8): A(f'v_max_f32 v{vM}, v{vM}, v{vML+2*w}')
    for w in range(8): A(f'v_sub_f32 v{vML+2*w}, v{vML+2*w}, v{vM}')
    for w in range(8): A(f'v_exp_f32 v{vML+2*w}, v{vML+2*w}')
    A('s_nop 0')
    A(f'v_mul_f32 v{vT2}, v{vO}, v{vML}'); A(f'v_mul_f32 v{vT3}, v{vML+1}, v{vML}')
    for w in range(1,8):
        A(f'v_fma_f32 v{vT2}, v{vO+w}, v{vML+2*w}, v{vT2}'); A(f'v_fma_f32 v{vT3}, v{vML+2*w+1}, v{vML+2*w}, v{vT3}')
    A(f'v_rcp_f32 v{vT3}, v{vT3}'); A('s_nop 0')
    A(f'v_mul_f32 v{vT2}, v{vT2}, v{vT3}')
    A(f'v_cvt_pk_bf16_f32 v{vT2}, v{vT2}, v{vT2}')
    A(f'v_bfe_u32 v{vT1}, v0, 5, 1'); A(f'v_lshlrev_b32 v{vT1}, 8, v{vT1}')
    A(f'v_lshrrev_b32 v{vT3}, 6, v0'); A(f'v_lshl_add_u32 v{vT1}, v{vT3}, 6, v{vT1}')
    A(f'v_and_b32 v{vT3}, 3, v0'); A(f'v_lshl_add_u32 v{vT1}, v{vT3}, 4, v{vT1}')
    A(f'v_bfe_u32 v{vT3}, v0, 2, 3'); A(f'v_lshl_add_u32 v{vT1}, v{vT3}, 1, v{vT1}')
    A(f'ds_write_b16 v{vT1}, v{vT2} offset:4096')
    A('s_waitcnt lgkmcnt(0)'); A('s_barrier')
    A(f'v_and_b32 v{vT0}, 7, v{vJ}')
    A(f'v_lshlrev_b32 v{vT0}, 6, v{vT0}'); A(f'v_lshl_add_u32 v{vT0}, v{vG}, 2, v{vT0}')
    A('s_lshl_b32 s47, s40, 4'); A(f'v_add_u32 v{vT0}, s47, v{vT0}')
    A(f'ds_read_b32 v{vX}, v{vT0} offset:4096')
    A('s_waitcnt lgkmcnt(0) vmcnt(0)')
    vB2=136
    for n in range(8):
        A(f'v_mov_b32_dpp v{vXb}, v{vX} row_newbcast:{n} row_mask:0xf bank_mask:0xf')
        for pi in range(2):
            for w in range(4):
                A(f'v_perm_b32 v{vB2+pi*4+w}, v{vXb}, v{vXb}, v{vSel+2*w+pi}')
        A('s_nop 1')
        for pi in range(2):
            r=vWo+(n*2+pi)*4
            c='0' if (n==0 and pi==0) else f'v[{vAcc}:{vAcc+3}]'
            A(f'v_mfma_f32_16x16x32_bf16 v[{vAcc}:{vAcc+3}], v[{r}:{r+3}], v[{vB2+pi*4}:{vB2+pi*4+3}], {c}')
    A('s_nop 7'); A('s_nop 1')
    A(f'v_lshlrev_b32 v{vT0}, 4, v0')
    A(f'ds_write_b128 v{vT0}, v[{vAcc}:{vAcc+3}]')
    A('s_waitcnt lgkmcnt(0)'); A('s_barrier')
    A('s_cmp_ge_u32 s40, 2'); A('s_cbranch_scc1 L_comb_end')
    A(f'v_lshrrev_b32 v{vT0}, 5, v0'); A(f'v_lshlrev_b32 v{vT0}, 8, v{vT0}')
    A(f'v_and_b32 v{vT1}, 7, v0'); A(f'v_lshl_add_u32 v{vT0}, v{vT1}, 4, v{vT0}')
    A(f'v_bfe_u32 v{vT1}, v0, 3, 2'); A(f'v_lshl_add_u32 v{vT0}, v{vT1}, 2, v{vT0}')
    for w in range(4): A(f'ds_read_b32 v{vO+w}, v{vT0} offset:{w*1024}')
    A('s_waitcnt lgkmcnt(0)')
    A(f'v_add_f32 v{vO}, v{vO}, v{vO+1}'); A(f'v_add_f32 v{vO+2}, v{vO+2}, v{vO+3}'); A(f'v_add_f32 v{vO}, v{vO}, v{vO+2}')
    A('s_mul_i32 s54, s41, 2304'); A('s_mul_i32 s55, s42, 288'); A('s_add_u32 s54, s54, s55'); A('s_add_u32 s54, s54, 0x80000')
    A(f'v_lshlrev_b32 v{vT0}, 2, v0')
    A('v_cmp_gt_u32 vcc, 72, v0'); A('s_and_saveexec_b64 s[58:59], vcc')
    A(f'buffer_store_dword v{vO}, v{vT0}, s[36:39], s54 offen')
    A.label('L_comb_end')
    A('s_endpgm')

    head(A,'fin_kernel')
    A('s_cmp_ge_u32 s2, 5'); A('s_cbranch_scc1 L_fin_end')
    A('s_load_dwordx16 s[4:19], s[0:1], 0')
    A('s_lshl_b32 s3, s2, 8'); A('v_add_u32 v1, s3, v0')
    A('v_cmp_le_u32 vcc, 576, v1'); A('s_nop 1')
    A('v_cndmask_b32 v2, 0, 1, vcc')
    A('v_mul_u32_u24 v3, 576, v2'); A('v_sub_u32 v3, v1, v3')
    A(f'v_mul_u32_u24 v4, {16*2304}, v2'); A('v_lshl_add_u32 v4, v3, 2, v4')
    A('s_waitcnt lgkmcnt(0)')
    A('s_mov_b32 s36, s18'); A('s_mov_b32 s37, s19'); A('s_mov_b32 s38, 0x100000'); A('s_mov_b32 s39, 0x20000')
    A('s_mov_b32 s54, 0x80000')
    for h in range(16):
        A(f'buffer_load_dword v{8+h}, v4, s[36:39], s54 offen')
        A('s_add_u32 s54, s54, 2304')
    A('s_mov_b32 s32, s14'); A('s_mov_b32 s33, s15'); A('s_mov_b32 s34, 2304'); A('s_mov_b32 s35, 0x20000')
    A('s_waitcnt vmcnt(0)')
    for h in range(1,16): A(f'v_add_f32 v8, v8, v{8+h}')
    A('v_cvt_pk_bf16_f32 v8, v8, v8')
    A('v_lshlrev_b32 v5, 1, v1')
    A('buffer_store_short v8, v5, s[32:35], 0 offen')
    A.label('L_fin_end')
    A('s_endpgm')
    kd(A,'main_kernel',nv); kd(A,'comb_kernel',144); kd(A,'fin_kernel',32)
    return A.text()

if __name__=='__main__':
    import subprocess
    open('k1.s','w').write(gen())
    print(subprocess.run(['python','build.py','k1.s'],capture_output=True,text=True))
```

```python
import sys, math, struct
from gen1 import Asm, kd, head, selectors, f2u, CEXP
NAME='standalone__gqa_block_cached__decode_kernel'

def gen(mapping=1, ldflag=' nt', wflag='', stamp=False, sc=' sc1', pollsleep=0, woflag=' nt', D=32, G=4, NS=9, spinsleep=1, lprio=0, wopos=1, rot=0, noq=0):
    W=8; C=7
    A=Asm()
    RING=NS*16384
    LDS_O=RING; LDS_Y=RING+8192; LDS_Q=RING+12288; LDS_ML=LDS_Q+512; LDS_FL=LDS_ML+128
    LDS_LAND=LDS_FL; LDS_TAG=LDS_FL+8; LDS_QF=LDS_FL+16; LDS_FREE=LDS_FL+32
    LDS_SZ=LDS_FL+128
    assert LDS_SZ<=163840
    QSLOT=0x80000
    A.raw(f'; @launch grid=(256,1,1) block=(512,1,1) lds={LDS_SZ}')
    A.raw('.amdgcn_target "amdgcn-amd-amdhsa--gfx950"')
    head(A,NAME)
    vLane,vG,vJ,vKoff,vVoff,vW0,vW1,vX,vXb = 1,2,3,4,5,6,7,8,9
    vM,vMc,vL,vT0,vT1,vT2,vT3,vGrab = 10,11,12,13,14,15,16,17
    vSel=18; vFl=26; vOne=27; vAcc=28; vB=32; vRd=40; vBuf=48
    vK=48; vV=80; vHd=42
    vQ=176; vS=192; vPk=200; vWo=204
    nv=256
    dpp='row_mask:0xf bank_mask:0xf'
    def ST(i):
        if stamp: A(f's_memrealtime s[{80+2*i}:{81+2*i}]')
    def spin_budget(lbl):
        A('s_sub_u32 s58, s58, 1'); A('s_cmp_lg_u32 s58, 0'); A(f's_cbranch_scc1 {lbl}')
    def wo_loads():
        A('s_mul_i32 s47, s52, 294912'); A('s_mul_i32 s48, s42, 144'); A('s_add_u32 s47, s47, s48')
        A('s_add_u32 s28, s12, s47'); A('s_addc_u32 s29, s13, 0'); A(f's_sub_u32 s30, {4096*1152}, s47')
        A('s_lshr_b32 s47, s40, 2'); A('s_lshl_b32 s47, s47, 7'); A('s_and_b32 s48, s40, 3'); A('s_lshl_b32 s48, s48, 1'); A('s_add_u32 s47, s47, s48')
        A('s_mul_i32 s54, s47, 1152')
        A(f'v_min_u32 v{vT2}, 8, v{vJ}'); A(f'v_lshlrev_b32 v{vT2}, 4, v{vT2}')
        A(f'v_mul_u32_u24 v{vT3}, 36864, v{vG}'); A(f'v_add_u32 v{vW0}, v{vT2}, v{vT3}')
        for r in range(4):
            for pi in range(2):
                rr=vWo+(r*2+pi)*4
                A(f'buffer_load_dwordx4 v[{rr}:{rr+3}], v{vW0}, s[28:31], s54 offen offset:{pi*1152}{woflag}')
            if r<3: A('s_add_u32 s54, s54, 9216')

    A('s_cmp_ge_u32 s2, 256'); A('s_cbranch_scc1 L_end')
    A('s_load_dwordx16 s[4:19], s[0:1], 0')
    A('s_memrealtime s[70:71]')
    ST(0)
    A(f'v_and_b32 v{vLane}, 63, v0')
    A(f'v_lshrrev_b32 v{vT0}, 6, v0')
    A(f'v_lshrrev_b32 v{vG}, 4, v{vLane}')
    A(f'v_readfirstlane_b32 s40, v{vT0}')
    A(f'v_and_b32 v{vJ}, 15, v{vLane}')
    if mapping==0:
        A('s_lshr_b32 s41, s2, 3'); A('s_and_b32 s42, s2, 7')
    elif mapping==1:
        A('s_and_b32 s41, s2, 31'); A('s_lshr_b32 s42, s2, 5')
    A('s_and_b32 s52, s41, 15'); A('s_lshr_b32 s53, s41, 4')
    A(f'v_lshlrev_b32 v{vVoff}, 4, v{vLane}')
    for r in (23,27,31,35,39): A(f's_mov_b32 s{r}, 0x20000')
    A('s_mov_b32 s38, 0x200000')
    A('s_lshl_b32 s55, s41, 3'); A('s_add_u32 s55, s55, s42'); A('s_lshl_b32 s55, s55, 11')
    A('s_mov_b32 s58, 0x200000')
    A(f'v_mov_b32 v{vM}, 0xff7fffff'); A(f'v_mov_b32 v{vMc}, 0xff7fffff'); A(f'v_mov_b32 v{vL}, 0')
    A(f'v_mov_b32 v{vFl}, {LDS_FL}')
    A('s_cmp_lg_u32 s40, 0'); A('s_cbranch_scc1 L_notloader')
    if lprio: A(f's_setprio {lprio}')
    vKo=48
    A(f'v_and_b32 v{vT0}, 3, v{vJ}')
    A(f'v_lshlrev_b32 v{vT0}, 2, v{vT0}')
    A(f'v_lshrrev_b32 v{vT1}, 2, v{vJ}')
    A(f'v_add_u32 v{vT0}, v{vT0}, v{vT1}')
    A(f'v_lshlrev_b32 v{vT0}, 8, v{vT0}')
    A(f'v_lshl_add_u32 v{vKo}, v{vG}, 4, v{vT0}')
    for i in range(1,4): A(f'v_add_u32 v{vKo+i}, {64*i}, v{vKo}')
    A(f'v_lshlrev_b32 v{vT0}, 2, v{vLane}'); A(f'v_and_b32 v{vT0}, 0x7f, v{vT0}'); A(f'v_mov_b32 v{vT1}, 0')
    A(f'v_add_u32 v{vT0}, {LDS_FL}, v{vT0}')
    A(f'ds_write_b32 v{vT0}, v{vT1}')
    A('s_lshl_b32 s64, s42, 20')
    if rot:
        A('s_mov_b32 s68, s64'); A(f's_mul_i32 s47, s2, {rot}'); A('s_and_b32 s47, s47, 127'); A('s_lshl_b32 s47, s47, 13'); A('s_add_u32 s64, s64, s47')
    A('s_mov_b32 s22, 0x800000'); A('s_mov_b32 s26, 0x800000')
    A('s_lshl_b32 s50, s41, 23'); A('s_lshr_b32 s51, s41, 9')
    A('s_mov_b32 s62, 0')
    A('s_mov_b32 s66, 0')
    A('s_mov_b32 s67, 0')
    A(f'v_mov_b32 v{vT3}, {LDS_FREE}')
    A('s_waitcnt lgkmcnt(0)')
    A('s_add_u32 s20, s6, s50'); A('s_addc_u32 s21, s7, s51')
    A('s_add_u32 s24, s8, s50'); A('s_addc_u32 s25, s9, s51')
    A('s_mov_b32 s36, s18'); A('s_mov_b32 s37, s19')
    def tile_loads(first=False, waits=True, pub=True):
        A('s_add_u32 s65, s64, 0x1000')
        for n in range(16):
            kv=n//8; i=n%8
            if kv==0 or i%4==0: A(f's_add_u32 m0, s66, {n*1024}')
            if n%G==0 and waits:
                A(f's_waitcnt vmcnt({D-G})')
                if pub and (n-(D-G))%8==0:
                    A('s_add_u32 s67, s67, 1'); A(f'v_mov_b32 v{vT1}, s67'); A(f'ds_write_b32 v{vFl}, v{vT1}')
            elif kv==0 or i%4==0: A('s_nop 0')
            if kv==0: A(f'buffer_load_dwordx4 v{vKo+i%4}, s[20:23], s{64 if i<4 else 65} offen{ldflag} lds')
            else: A(f'buffer_load_dwordx4 v{vVoff}, s[24:27], s{64 if i<4 else 65} offen offset:{(i%4)*1024}{ldflag} lds')
        A('s_add_u32 s64, s64, 0x2000')
        if rot:
            A('s_and_b32 s64, s64, 0xfffff'); A('s_or_b32 s64, s64, s68')
        A('s_add_u32 s66, s66, 16384'); A(f's_cmp_ge_u32 s66, {RING}'); A('s_cselect_b32 s66, 0, s66')
        A('s_add_u32 s62, s62, 1')
    first_n = [n for n in range(0,16,G) if (n-(D-G))%8==0][0]
    v0 = (first_n-(D-G))//8
    A(f's_mov_b32 s67, {v0-1}')
    tile_loads()
    A('s_barrier')
    if wopos==0: wo_loads()
    A.label('L_ld_loop')
    if wopos==1:
        A('s_cmp_lg_u32 s62, 64'); A('s_cbranch_scc1 L_ld_nowo')
        wo_loads()
        A.label('L_ld_nowo')
    A(f's_lshr_b32 s47, s66, 12'); A(f's_add_u32 s47, s47, {LDS_FREE}'); A(f'v_mov_b32 v{vT3}, s47')
    A(f's_sub_u32 s48, s62, {NS-1}')
    A.label('L_ld_free')
    A(f'ds_read_b32 v{vT2}, v{vT3}')
    A('s_waitcnt lgkmcnt(0)')
    A(f'v_readfirstlane_b32 s47, v{vT2}')
    A('s_cmp_ge_i32 s47, s48'); A('s_cbranch_scc1 L_ld_go')
    spin_budget('L_ld_free')
    A.label('L_ld_go')
    if stamp:
        A('s_and_b32 s47, s62, 3'); A('s_cbranch_scc1 L_ld_nost')
        A('s_memrealtime s[96:97]'); A('s_waitcnt lgkmcnt(0)')
        A('s_lshl_b32 s47, s2, 7'); A('s_add_u32 s47, s47, s62'); A('s_add_u32 s47, s47, 0x140000')
        A(f'v_mov_b32 v{vT2}, s96'); A(f'v_mov_b32 v{vT1}, 0')
        A('s_mov_b64 exec, 1')
        A(f'buffer_store_dword v{vT2}, v{vT1}, s[36:39], s47 offen')
        A('s_mov_b64 exec, -1')
        A.label('L_ld_nost')
    tile_loads()
    A('s_cmp_lt_u32 s62, 128'); A('s_cbranch_scc1 L_ld_loop')
    lastn=[n for n in range(0,16,G) if (n-(D-G))%8==0][-1]
    lastval=(2032+lastn-(D-G))//8
    for val in range(lastval+1,257):
        A(f's_waitcnt vmcnt({2048-8*val})')
        A(f'v_mov_b32 v{vT1}, {val}'); A(f'ds_write_b32 v{vFl}, v{vT1}')
    if lprio: A('s_setprio 0')
    selectors(A,vJ,vSel,vT0,vT1,vT2,vT3)
    for i in range(4): A(f'v_mov_b32 v{vAcc+i}, 0')
    A('s_branch L_exit')
    A.label('L_notloader')
    A('s_waitcnt lgkmcnt(0)')
    A('s_mov_b32 s36, s18'); A('s_mov_b32 s37, s19')
    A('s_cmp_lg_u32 s40, 1'); A('s_cbranch_scc1 L_cons0')
    vWq=vBuf; vXv=192; vAq=212; vTag=220; vGr=224
    A('s_cmp_lg_u32 s2, 0'); A('s_cbranch_scc1 L_notag')
    A('s_mov_b32 s32, s16'); A('s_mov_b32 s33, s17'); A('s_mov_b32 s34, 256')
    A('s_or_b32 s71, s71, 0x80000000')
    A(f'v_mov_b32 v{vTag}, s70'); A(f'v_mov_b32 v{vTag+1}, s71'); A(f'v_mov_b32 v{vT3}, 0')
    A('s_mov_b64 exec, 1')
    A(f'buffer_store_dwordx2 v[{vTag}:{vTag+1}], v{vT3}, s[32:35], 0 offen{sc}')
    A('s_mov_b64 exec, -1')
    A.label('L_notag')
    for i in range(4): A(f'v_mov_b32 v{vAcc+i}, -1')
    A(f'buffer_store_dwordx4 v[{vAcc}:{vAcc+3}], v{vVoff}, s[36:39], s55 offen{sc}')
    A('s_mov_b64 exec, 0x7ffff')
    A(f'buffer_store_dwordx4 v[{vAcc}:{vAcc+3}], v{vVoff}, s[36:39], s55 offen offset:1264{sc}')
    A('s_mov_b64 exec, -1')
    A('s_lshl_b32 s47, s52, 9'); A('s_lshl_b32 s48, s42, 6'); A('s_add_u32 s47, s47, s48')
    A('s_add_u32 s28, s10, s47'); A('s_addc_u32 s29, s11, 0'); A(f's_sub_u32 s30, {576*8192}, s47')
    A(f'v_lshrrev_b32 v{vT0}, 2, v{vLane}'); A(f'v_and_b32 v{vT1}, 3, v{vLane}')
    A('s_mov_b32 s47, 294912')
    A(f'v_mul_lo_u32 v{vW0}, v{vT0}, s47')
    A(f'v_lshl_add_u32 v{vW0}, v{vT1}, 4, v{vW0}')
    A('s_mov_b32 s54, 0')
    for n in range(36):
        r=vWq+4*n
        A(f'buffer_load_dwordx4 v[{r}:{r+3}], v{vW0}, s[28:31], s54 offen{wflag}')
        if n<35: A('s_add_u32 s54, s54, 0x2000')
        if n==1:
            A('s_mul_i32 s47, s53, 1152')
            A('s_add_u32 s32, s4, s47'); A('s_addc_u32 s33, s5, 0'); A('s_mov_b32 s34, 1152')
            A(f'v_mul_u32_u24 v{vT2}, 72, v{vT0}')
            for k in range(4): A(f'buffer_load_dwordx4 v[{vXv+4*k}:{vXv+4*k+3}], v{vT2}, s[32:35], 0 offen offset:{16*k}')
            A(f'buffer_load_dwordx2 v[{vXv+16}:{vXv+17}], v{vT2}, s[32:35], 0 offen offset:64')
    A('s_barrier')
    A('s_mov_b32 s72, 0x05040100'); A('s_mov_b32 s73, 0x07060302')
    for m in range(18):
        n=2*m+1
        A(f's_waitcnt vmcnt({34 if m==0 else 35-n})')
        a=vWq+8*m; b=a+4
        for w in range(4):
            A(f'v_perm_b32 v{vB+2*w}, v{b+w}, v{a+w}, s72')
            A(f'v_perm_b32 v{vB+2*w+1}, v{b+w}, v{a+w}, s73')
        for e in range(8):
            c='0' if m==0 else f'v{vAq+e}'
            A(f'v_dot2_f32_bf16 v{vAq+e}, v{vB+e}, v{vXv+m}, {c}')
    ST(1)
    A('s_load_dwordx2 s[74:75], s[16:17], 0')
    A('s_nop 2')
    for rot in (4,8):
        for e in range(8): A(f'v_add_f32_dpp v{vAq+e}, v{vAq+e}, v{vAq+e} row_ror:{rot} {dpp}')
    for ins in ('v_permlane16_swap_b32','v_permlane32_swap_b32'):
        for e in range(8): A(f'v_mov_b32 v{vB+e}, v{vAq+e}')
        for e in range(8): A(f'{ins} v{vAq+e}, v{vB+e}')
        for e in range(8): A(f'v_add_f32 v{vAq+e}, v{vAq+e}, v{vB+e}')
    for e in range(8): A(f'v_cvt_pk_bf16_f32 v{vB+e}, v{vAq+e}, v{vAq+e}')
    A('s_waitcnt lgkmcnt(0)')
    A('s_cmp_lg_u32 s75, 0'); A('s_cbranch_scc1 L_tagok')
    A('s_mov_b32 s32, s16'); A('s_mov_b32 s33, s17'); A('s_mov_b32 s34, 256')
    A(f'v_mov_b32 v{vT3}, 0')
    A('s_mov_b64 exec, 1')
    A.label('L_tagpoll')
    A(f'buffer_load_dwordx2 v[{vTag}:{vTag+1}], v{vT3}, s[32:35], 0 offen{sc}')
    A('s_waitcnt vmcnt(0)')
    A(f'v_readfirstlane_b32 s74, v{vTag}'); A(f'v_readfirstlane_b32 s75, v{vTag+1}')
    A('s_cmp_lg_u32 s75, 0'); A('s_cbranch_scc1 L_tagok2')
    A('s_sleep 16')
    spin_budget('L_tagpoll')
    A.label('L_tagok2')
    A('s_mov_b64 exec, -1')
    A.label('L_tagok')
    A('s_lshl_b32 s76, s74, 16')
    A('s_lshr_b32 s77, s74, 16'); A('s_lshl_b32 s75, s75, 16'); A('s_or_b32 s77, s77, s75')
    A(f'v_mov_b32 v{vT2}, s76')
    A('s_mov_b32 s47, 0x07060100')
    for e in range(8):
        A(f'v_perm_b32 v{vGr+2*e}, v{vT2}, v{vB+e}, s47')
        A(f'v_mov_b32 v{vGr+2*e+1}, s77')
    A('s_lshl_b32 s54, s41, 11'); A(f's_add_u32 s54, s54, {QSLOT}')
    A('s_lshl_b32 s47, s42, 8'); A('s_add_u32 s47, s47, s54')
    A(f'v_lshlrev_b32 v{vT0}, 6, v{vLane}')
    A('s_mov_b64 exec, 0xf')
    for k in range(4): A(f'buffer_store_dwordx4 v[{vGr+4*k}:{vGr+4*k+3}], v{vT0}, s[36:39], s47 offen offset:{16*k}{sc}')
    A('s_mov_b64 exec, -1')
    A(f'v_lshlrev_b32 v{vT0}, 5, v{vLane}')
    vP=vBuf
    A.label('L_pollq')
    A(f'buffer_load_dwordx4 v[{vP}:{vP+3}], v{vT0}, s[36:39], s54 offen{sc}')
    A(f'buffer_load_dwordx4 v[{vP+4}:{vP+7}], v{vT0}, s[36:39], s54 offen offset:16{sc}')
    A('s_waitcnt vmcnt(0)')
    for k in range(4):
        A(f'v_xor_b32 v{vP+8+2*k}, s76, v{vP+2*k}'); A(f'v_xor_b32 v{vP+9+2*k}, s77, v{vP+2*k+1}')
    A(f'v_or3_b32 v{vT1}, v{vP+8}, v{vP+10}, v{vP+12}'); A(f'v_or_b32 v{vT1}, v{vT1}, v{vP+14}'); A(f'v_lshrrev_b32 v{vT1}, 16, v{vT1}')
    A(f'v_or3_b32 v{vT1}, v{vT1}, v{vP+9}, v{vP+11}'); A(f'v_or3_b32 v{vT1}, v{vT1}, v{vP+13}, v{vP+15}')
    A(f'v_cmp_ne_u32 vcc, 0, v{vT1}')
    A('s_cbranch_vccz L_pollq_done')
    spin_budget('L_pollq')
    A.label('L_pollq_done')
    A(f'v_perm_b32 v{vP+8}, v{vP+2}, v{vP}, s72'); A(f'v_perm_b32 v{vP+9}, v{vP+6}, v{vP+4}, s72')
    A(f'v_lshlrev_b32 v{vT0}, 3, v{vLane}')
    A(f'v_add_u32 v{vT0}, {LDS_Q}, v{vT0}')
    A(f'ds_write_b64 v{vT0}, v[{vP+8}:{vP+9}]')
    A('s_waitcnt lgkmcnt(0)')
    A(f'v_mov_b32 v{vT1}, 1')
    A(f'ds_write_b32 v{vFl}, v{vT1} offset:16')
    ST(2)
    A('s_branch L_cons')
    A.label('L_cons0')
    A('s_barrier')
    A.label('L_cons')
    A('s_sub_u32 s62, s40, 2'); A('s_cmp_ge_u32 s40, 2'); A('s_cselect_b32 s62, s62, 6')
    A('s_mov_b32 s63, s62')
    selectors(A,vJ,vSel,vT0,vT1,vT2,vT3)
    for i in range(4): A(f'v_mov_b32 v{vAcc+i}, 0')
    A(f's_mov_b32 s46, 0x{f2u(CEXP):08x}')
    def fetch(tag):
        A('s_lshl_b32 s47, s63, 14'); A(f'v_add_u32 v{vRd}, s47, v{vVoff}')
        A('s_lshl_b32 s48, s62, 1'); A('s_add_u32 s48, s48, 2')
        A.label(f'L_lspin{tag}')
        A(f'ds_read_b32 v{vT2}, v{vFl}')
        A('s_waitcnt lgkmcnt(0)')
        A(f'v_readfirstlane_b32 s47, v{vT2}')
        A('s_cmp_ge_i32 s47, s48'); A(f's_cbranch_scc1 L_lok{tag}')
        if spinsleep: A(f's_sleep {spinsleep}')
        spin_budget(f'L_lspin{tag}')
        A.label(f'L_lok{tag}')
        for n in range(16): A(f'ds_read_b128 v[{vK+4*n}:{vK+4*n+3}], v{vRd} offset:{n*1024}')
        A('s_lshl_b32 s47, s63, 2'); A(f's_add_u32 s47, s47, {LDS_FREE}'); A(f'v_mov_b32 v{vT3}, s47')
        A('s_add_u32 s48, s62, 1'); A(f'v_mov_b32 v{vT2}, s48')
        A('s_waitcnt lgkmcnt(0)')
        A(f'ds_write_b32 v{vT3}, v{vT2}')
    fetch('A')
    A.label('L_qspin')
    A(f'ds_read_b32 v{vT2}, v{vFl} offset:16')
    A('s_waitcnt lgkmcnt(0)')
    A(f'v_readfirstlane_b32 s47, v{vT2}')
    A('s_cmp_lg_u32 s47, 0'); A('s_cbranch_scc1 L_qok')
    A('s_sleep 1')
    spin_budget('L_qspin')
    A.label('L_qok')
    A(f'v_lshrrev_b32 v{vT0}, 3, v{vJ}'); A(f'v_lshlrev_b32 v{vT0}, 8, v{vT0}')
    A(f'v_lshl_add_u32 v{vT0}, v{vG}, 4, v{vT0}'); A(f'v_add_u32 v{vT0}, {LDS_Q}, v{vT0}')
    for s in range(4): A(f'ds_read_b128 v[{vQ+4*s}:{vQ+4*s+3}], v{vT0} offset:{64*s}')
    wo_loads()
    A('s_waitcnt lgkmcnt(0)')
    ST(3)
    A.label('L_loop')
    for s in range(4):
        for t in range(2):
            r=vK+(t*4+s)*4
            c='0' if s==0 else f'v[{vS+4*t}:{vS+4*t+3}]'
            A(f'v_mfma_f32_16x16x32_bf16 v[{vS+4*t}:{vS+4*t+3}], v[{r}:{r+3}], v[{vQ+4*s}:{vQ+4*s+3}], {c}')
    A(f's_add_u32 s62, s62, {C}'); A(f's_add_u32 s63, s63, {C}'); A(f's_sub_u32 s47, s63, {NS}'); A(f's_cmp_ge_u32 s63, {NS}'); A('s_cselect_b32 s63, s47, s63')
    A('s_nop 3')
    A(f'v_max3_f32 v{vT0}, v{vS}, v{vS+1}, v{vS+2}')
    A(f'v_max3_f32 v{vT1}, v{vS+3}, v{vS+4}, v{vS+5}')
    A(f'v_max3_f32 v{vT0}, v{vT0}, v{vS+6}, v{vS+7}')
    A(f'v_max_f32 v{vT0}, v{vT0}, v{vT1}')
    A(f'v_cmp_gt_f32 vcc, v{vT0}, v{vM}')
    A(f's_cbranch_vccz L_fast')
    A(f'v_mov_b32 v{vT1}, v{vT0}'); A('s_nop 1')
    A(f'v_permlane32_swap_b32 v{vT0}, v{vT1}')
    A(f'v_max_f32 v{vT0}, v{vT0}, v{vT1}')
    A(f'v_mov_b32 v{vT1}, v{vT0}'); A('s_nop 1')
    A(f'v_permlane16_swap_b32 v{vT0}, v{vT1}')
    A(f'v_max3_f32 v{vM}, v{vT0}, v{vT1}, v{vM}')
    A(f'v_mul_f32 v{vT0}, s46, v{vM}')
    A(f'v_sub_f32 v{vT1}, v{vMc}, v{vT0}')
    A(f'v_mov_b32 v{vMc}, v{vT0}')
    A(f'v_exp_f32 v{vT1}, v{vT1}'); A('s_nop 0')
    A(f'v_mul_f32 v{vL}, v{vL}, v{vT1}')
    for i in range(4): A(f'v_mul_f32 v{vAcc+i}, v{vAcc+i}, v{vT1}')
    A.label(f'L_fast')
    for i in range(8): A(f'v_fma_f32 v{vS+i}, v{vS+i}, s46, -v{vMc}')
    for i in range(8): A(f'v_exp_f32 v{vS+i}, v{vS+i}')
    A('s_nop 0')
    for i in range(4): A(f'v_cvt_pk_bf16_f32 v{vPk+i}, v{vS+2*i}, v{vS+2*i+1}')
    def perms(i,src=vPk):
        for w in range(4):
            A(f'v_perm_b32 v{vB+(i%2)*4+w}, v{src+i//2}, v{src+i//2}, v{vSel+2*w+(i%2)}')
    perms(0); perms(1)
    adds=[f'v_add_f32 v{vT0}, v{vS}, v{vS+1}', f'v_add_f32 v{vT1}, v{vS+2}, v{vS+3}', f'v_add_f32 v{vT2}, v{vS+4}, v{vS+5}', f'v_add_f32 v{vT3}, v{vS+6}, v{vS+7}',
          f'v_add_f32 v{vT0}, v{vT0}, v{vT1}', f'v_add_f32 v{vT2}, v{vT2}, v{vT3}', f'v_add_f32 v{vL}, v{vL}, v{vT0}', f'v_add_f32 v{vL}, v{vL}, v{vT2}']
    for i in range(8):
        r=vV+i*4
        A(f'v_mfma_f32_16x16x32_bf16 v[{vAcc}:{vAcc+3}], v[{r}:{r+3}], v[{vB+(i%2)*4}:{vB+(i%2)*4+3}], v[{vAcc}:{vAcc+3}]')
        if i+2<8: perms(i+2)
        elif i==6:
            for a in adds[:4]: A(a)
    for a in adds[4:]: A(a)
    A('s_cmp_ge_u32 s62, 128'); A('s_cbranch_scc1 L_exit')
    fetch('B')
    A('s_branch L_loop')
    A.label('L_exit')
    ST(4)
    A('s_lshl_b32 s60, s53, 15'); A('s_lshl_b32 s47, s42, 8'); A('s_add_u32 s60, s60, s47'); A(f's_add_u32 s60, s60, {QSLOT}')
    A(f'v_lshlrev_b32 v{vX}, 11, v{vJ}')
    A('s_cmp_lg_u32 s40, 1'); A('s_cbranch_scc1 L_nohdr')
    A(f'buffer_load_dwordx2 v[{vHd}:{vHd+1}], v{vX}, s[36:39], s60 offen{sc}')
    A.label('L_nohdr')
    A(f'v_mov_b32 v{vT1}, v{vL}'); A('s_nop 1')
    A(f'v_permlane32_swap_b32 v{vL}, v{vT1}'); A(f'v_add_f32 v{vL}, v{vL}, v{vT1}')
    A(f'v_mov_b32 v{vT1}, v{vL}'); A('s_nop 1')
    A(f'v_permlane16_swap_b32 v{vL}, v{vT1}'); A(f'v_add_f32 v{vL}, v{vL}, v{vT1}')
    A('s_lshl_b32 s47, s40, 10'); A(f's_add_u32 s47, s47, {LDS_O}')
    A(f'v_add_u32 v{vT0}, s47, v{vVoff}')
    A(f'ds_write_b128 v{vT0}, v[{vAcc}:{vAcc+3}]')
    A(f'v_and_b32 v{vT0}, 8, v{vJ}')
    A('s_lshl_b32 s47, s40, 4'); A(f's_add_u32 s47, s47, {LDS_ML}'); A(f'v_add_u32 v{vT1}, s47, v{vT0}')
    A(f'v_mov_b32 v{vS}, v{vMc}'); A(f'v_mov_b32 v{vS+1}, v{vL}')
    A(f'ds_write_b64 v{vT1}, v[{vS}:{vS+1}]')
    A(f'v_lshrrev_b32 v{vT2}, 1, v{vJ}'); A(f'v_lshlrev_b32 v{vT2}, 11, v{vT2}')
    A(f'v_and_b32 v{vT3}, 1, v{vJ}'); A(f'v_lshl_add_u32 v{vT3}, v{vG}, 4, v{vT3}')
    A('s_lshl_b32 s47, s40, 1'); A(f'v_add_u32 v{vT3}, s47, v{vT3}')
    A(f'v_lshl_add_u32 v{vKoff}, v{vT3}, 4, v{vT2}')
    A('s_lshr_b32 s47, s40, 2'); A('s_lshl_b32 s47, s47, 3'); A('s_add_u32 s47, s47, 1264')
    A(f'v_add_u32 v{vW1}, s47, v{vT2}')
    A('s_lshl_b32 s54, s41, 14')
    A(f'v_add_u32 v{vRd}, {LDS_O}, v{vVoff}'); A(f'v_add_u32 v{vRd+1}, {LDS_ML}, v{vT0}')
    A('s_waitcnt lgkmcnt(0)'); A('s_barrier')
    A('s_cmp_lg_u32 s40, 0'); A('s_cbranch_scc1 L_poll1_pre')
    vO=vBuf; vML=vBuf+32
    for w in range(W): A(f'ds_read_b128 v[{vO+4*w}:{vO+4*w+3}], v{vRd} offset:{w*1024}')
    for w in range(W): A(f'ds_read_b64 v[{vML+2*w}:{vML+2*w+1}], v{vRd+1} offset:{w*16}')
    A('s_waitcnt lgkmcnt(0)')
    A(f'v_max3_f32 v{vM}, v{vML}, v{vML+2}, v{vML+4}'); A(f'v_max3_f32 v{vT1}, v{vML+6}, v{vML+8}, v{vML+10}')
    A(f'v_max3_f32 v{vM}, v{vM}, v{vML+12}, v{vML+14}'); A(f'v_max_f32 v{vM}, v{vM}, v{vT1}')
    for w in range(W): A(f'v_sub_f32 v{vML+2*w}, v{vML+2*w}, v{vM}')
    for w in range(W): A(f'v_exp_f32 v{vML+2*w}, v{vML+2*w}')
    A('s_nop 0')
    for i in range(4): A(f'v_mul_f32 v{vS+i}, v{vO+i}, v{vML}')
    A(f'v_mul_f32 v{vS+5}, v{vML+1}, v{vML}')
    for w in range(1,W):
        for i in range(4): A(f'v_fma_f32 v{vS+i}, v{vO+4*w+i}, v{vML+2*w}, v{vS+i}')
        A(f'v_fma_f32 v{vS+5}, v{vML+2*w+1}, v{vML+2*w}, v{vS+5}')
    A(f'v_mov_b32 v{vS+4}, v{vM}')
    for i in range(6): A(f'v_min_u32 v{vS+i}, 0xfffffffe, v{vS+i}')
    A(f'buffer_store_dwordx4 v[{vS}:{vS+3}], v{vVoff}, s[36:39], s55 offen{sc}')
    A('s_mov_b64 exec, 0x101')
    A(f'buffer_store_dwordx2 v[{vS+4}:{vS+5}], v{vT0}, s[36:39], s55 offen offset:1264{sc}')
    A('s_mov_b64 exec, -1')
    A.label('L_poll1_pre')
    A.label('L_poll1')
    vP=vBuf+64
    A(f'buffer_load_dwordx4 v[{vP}:{vP+3}], v{vKoff}, s[36:39], s54 offen{sc}')
    A(f'buffer_load_dwordx2 v[{vP+4}:{vP+5}], v{vW1}, s[36:39], s54 offen{sc}')
    A('s_waitcnt vmcnt(0)')
    A(f'v_max3_u32 v{vT0}, v{vP}, v{vP+1}, v{vP+2}'); A(f'v_max3_u32 v{vT1}, v{vP+3}, v{vP+4}, v{vP+5}')
    A(f'v_max_u32 v{vT0}, v{vT0}, v{vT1}')
    A(f'v_cmp_eq_u32 vcc, -1, v{vT0}')
    A('s_cbranch_vccz L_poll1_done')
    if pollsleep: A(f's_sleep {pollsleep}')
    spin_budget('L_poll1')
    A.label('L_poll1_done')
    ST(5)
    A(f'v_mov_b32 v{vT0}, v{vP+4}'); A('s_nop 1')
    for rot in (2,4,8):
        A(f'v_max_f32_dpp v{vT0}, v{vT0}, v{vT0} row_ror:{rot} {dpp}'); A('s_nop 1')
    A(f'v_sub_f32 v{vT1}, v{vP+4}, v{vT0}'); A(f'v_exp_f32 v{vT1}, v{vT1}'); A('s_nop 0')
    vals=[vP,vP+1,vP+2,vP+3,vP+5]
    for v in vals: A(f'v_mul_f32 v{v}, v{v}, v{vT1}')
    for rot in (2,4,8):
        for v in vals: A(f'v_add_f32_dpp v{v}, v{v}, v{v} row_ror:{rot} {dpp}')
    A(f'v_rcp_f32 v{vT1}, v{vP+5}'); A('s_nop 0')
    for i in range(4): A(f'v_mul_f32 v{vP+i}, v{vP+i}, v{vT1}')
    A(f'v_cvt_pk_bf16_f32 v{vT0}, v{vP}, v{vP+1}'); A(f'v_cvt_pk_bf16_f32 v{vT1}, v{vP+2}, v{vP+3}')
    A('s_nop 1')
    for pi in range(2):
        for rr in range(2):
            A(f'v_mov_b32_dpp v{vPk+pi*2+rr}, v{vT0+rr} row_newbcast:{pi} {dpp}')
    steps=[(pi,r) for pi in range(2) for r in range(4)]
    def perms2(k):
        pi,r=steps[k]
        for w in range(4):
            A(f'v_perm_b32 v{vB+(k%2)*4+w}, v{vPk+pi*2+r//2}, v{vPk+pi*2+r//2}, v{vSel+2*w+(r%2)}')
    perms2(0); perms2(1)
    for k in range(8):
        pi,r=steps[k]; rr=vWo+(r*2+pi)*4
        c='0' if k==0 else f'v[{vAcc}:{vAcc+3}]'
        A(f'v_mfma_f32_16x16x32_bf16 v[{vAcc}:{vAcc+3}], v[{rr}:{rr+3}], v[{vB+(k%2)*4}:{vB+(k%2)*4+3}], {c}')
        if k+2<8: perms2(k+2)
        elif k==6: A('s_nop 1')
    A(f'v_and_b32 v{vT0}, 7, v{vJ}'); A(f'v_lshlrev_b32 v{vT0}, 2, v{vT0}'); A(f'v_lshl_add_u32 v{vT0}, v{vG}, 7, v{vT0}')
    A('s_lshl_b32 s47, s40, 9'); A(f's_add_u32 s47, s47, {LDS_Y}'); A(f'v_add_u32 v{vT0}, s47, v{vT0}')
    A('s_nop 4')
    for r in range(4): A(f'ds_write_b32 v{vT0}, v{vAcc+r} offset:{r*32}')
    A('s_waitcnt lgkmcnt(0)'); A('s_barrier')
    A('s_cmp_eq_u32 s40, 1'); A('s_cbranch_scc1 L_final')
    A('s_cmp_lg_u32 s40, 0'); A('s_cbranch_scc1 L_stamp')
    A(f'v_min_u32 v{vT0}, 17, v{vLane}'); A(f'v_lshlrev_b32 v{vT0}, 4, v{vT0}'); A(f'v_add_u32 v{vT1}, {LDS_Y}, v{vT0}')
    for w in range(W): A(f'ds_read_b128 v[{vO+4*w}:{vO+4*w+3}], v{vT1} offset:{w*512}')
    A('s_waitcnt lgkmcnt(0)')
    for st in (1,2,4):
        for w in range(0,8,2*st):
            for i in range(4): A(f'v_add_f32 v{vO+4*w+i}, v{vO+4*w+i}, v{vO+4*(w+st)+i}')
    for i in range(4): A(f'v_min_u32 v{vO+i}, 0xfffffffe, v{vO+i}')
    A('s_mov_b64 exec, 0x3ffff')
    A(f'buffer_store_dwordx4 v[{vO}:{vO+3}], v{vT0}, s[36:39], s55 offen offset:1280{sc}')
    A('s_mov_b64 exec, -1')
    A('s_branch L_stamp')
    A.label('L_final')
    A('s_lshl_b32 s47, s42, 1'); A('s_add_u32 s47, s47, s53'); A('s_cmp_lg_u32 s47, s52'); A('s_cbranch_scc1 L_stamp')
    A(f'v_and_b32 v{vT0}, 31, v{vLane}'); A(f'v_min_u32 v{vT0}, 17, v{vT0}'); A(f'v_lshlrev_b32 v{vT0}, 4, v{vT0}')
    A(f'v_lshrrev_b32 v{vT1}, 5, v{vLane}'); A(f'v_lshl_add_u32 v{vT0}, v{vT1}, 14, v{vT0}')
    A('s_lshl_b32 s47, s53, 7'); A('s_add_u32 s47, s47, s42'); A('s_lshl_b32 s47, s47, 11'); A('s_add_u32 s59, s47, 1280')
    A.label('L_hdr')
    A(f'v_xor_b32 v{vT2}, s76, v{vHd}'); A(f'v_lshrrev_b32 v{vT2}, 16, v{vT2}'); A(f'v_xor_b32 v{vT3}, s77, v{vHd+1}'); A(f'v_or_b32 v{vT2}, v{vT2}, v{vT3}')
    A(f'v_cmp_ne_u32 vcc, 0, v{vT2}')
    A('s_cbranch_vccz L_poll2')
    A(f'buffer_load_dwordx2 v[{vHd}:{vHd+1}], v{vX}, s[36:39], s60 offen{sc}')
    A('s_waitcnt vmcnt(0)')
    spin_budget('L_hdr')
    A.label('L_poll2')
    A('s_mov_b32 s54, s59')
    for n in range(8):
        A(f'buffer_load_dwordx4 v[{vO+4*n}:{vO+4*n+3}], v{vT0}, s[36:39], s54 offen{sc}')
        if n<7: A('s_add_u32 s54, s54, 0x8000')
    A('s_waitcnt vmcnt(0)')
    A(f'v_max3_u32 v{vT1}, v{vO}, v{vO+1}, v{vO+2}')
    for i in range(3,31,2): A(f'v_max3_u32 v{vT1}, v{vT1}, v{vO+i}, v{vO+i+1}')
    A(f'v_max_u32 v{vT1}, v{vT1}, v{vO+31}')
    A(f'v_cmp_eq_u32 vcc, -1, v{vT1}')
    A('s_cbranch_vccz L_poll2_done')
    if pollsleep: A(f's_sleep {pollsleep}')
    spin_budget('L_poll2')
    A.label('L_poll2_done')
    for st in (1,2,4):
        for w in range(0,8,2*st):
            for i in range(4): A(f'v_add_f32 v{vO+4*w+i}, v{vO+4*w+i}, v{vO+4*(w+st)+i}')
    for i in range(4): A(f'v_mov_b32 v{vO+4+i}, v{vO+i}')
    A('s_nop 1')
    for i in range(4): A(f'v_permlane32_swap_b32 v{vO+i}, v{vO+4+i}')
    for i in range(4): A(f'v_add_f32 v{vO+i}, v{vO+i}, v{vO+4+i}')
    A(f'v_cvt_pk_bf16_f32 v{vO+8}, v{vO}, v{vO+1}'); A(f'v_cvt_pk_bf16_f32 v{vO+9}, v{vO+2}, v{vO+3}')
    A('s_mov_b32 s32, s14'); A('s_mov_b32 s33, s15'); A('s_mov_b32 s34, 2304')
    A('s_mul_i32 s47, s53, 1152'); A('s_mul_i32 s48, s42, 144'); A('s_add_u32 s47, s47, s48')
    A(f'v_lshlrev_b32 v{vT0}, 3, v{vLane}')
    A('s_mov_b64 exec, 0x3ffff')
    A(f'buffer_store_dwordx2 v[{vO+8}:{vO+9}], v{vT0}, s[32:35], s47 offen')
    A('s_mov_b64 exec, -1')
    A.label('L_stamp')
    if stamp:
        A('s_waitcnt vmcnt(0)')
        ST(6)
        A('s_getreg_b32 s94, hwreg(HW_REG_XCC_ID)'); A('s_waitcnt lgkmcnt(0)')
        A('s_mov_b64 exec, 1')
        for i in range(7): A(f'v_mov_b32 v{vS+i}, s{80+2*i}')
        A(f'v_mov_b32 v{vS+7}, s94')
        A('s_lshl_b32 s54, s2, 3'); A('s_add_u32 s54, s54, s40'); A('s_lshl_b32 s54, s54, 5'); A('s_add_u32 s54, s54, 0x100000')
        A(f'v_mov_b32 v{vT1}, 0')
        A(f'buffer_store_dwordx4 v[{vS}:{vS+3}], v{vT1}, s[36:39], s54 offen')
        A(f'buffer_store_dwordx4 v[{vS+4}:{vS+7}], v{vT1}, s[36:39], s54 offen offset:16')
    A.label('L_end')
    A('s_endpgm')
    kd(A,NAME,nv,ns=100)
    return A.text()

if __name__=='__main__':
    import subprocess,os
    for nm,kw in {'k8':dict(lprio=3,rot=37),'k8_s':dict(stamp=True,lprio=3),'k8_r37':dict(stamp=True,lprio=3,rot=37),'k8_d24':dict(stamp=True,lprio=3,D=24,rot=37),'k8_m0':dict(stamp=True,lprio=3,rot=37,mapping=0)}.items():
        open(nm+'.s','w').write(gen(**kw))
        r=subprocess.run(['python','build.py',nm+'.s'],capture_output=True,text=True); print(nm,r.returncode,r.stdout[-1500:])
    os.system('tar czf k8.tgz k8*.co k8*.args')
```
